```python
import torch

def _softmax(x, axis=-1):
    return torch.softmax(x, dim=axis)
def _gelu(x):
    return torch.nn.functional.gelu(x, approximate="tanh")
def _silu(x):
    return torch.nn.functional.silu(x)
def _sigmoid(x):
    return torch.sigmoid(x)
def _layernorm(x, axis=-1, eps=1e-5):
    m = x.mean(dim=axis, keepdim=True)
    v = x.var(dim=axis, keepdim=True, unbiased=False)
    return (x - m) / torch.sqrt(v + eps)
def _scatter_add(tgt, idx, src, axis=0):
    return tgt.clone().index_add_(axis, idx, src)
def _segment_sum(src, seg, n):
    out = torch.zeros((n,) + src.shape[1:], dtype=src.dtype)
    return out.index_add_(0, seg, src)
def _pad(x, pw):
    flat = tuple(v for pair in reversed(pw) for v in pair)
    return torch.nn.functional.pad(x, flat)

kernel_name = 'standalone__low_rank_proj_linformer__decode'

def setup_inputs():

    _w = (lambda a: (lambda t: t.to(torch.bfloat16) if t.is_floating_point() else t)(torch.as_tensor(a)))
    B, H, Sq, Skv, Dh, R = 4, 32, 1, 8192, 128, 64
    return {
        "q": _w((lambda *s: torch.randn(*s, dtype=torch.bfloat16) * 0.8)(B, H, Sq, Dh)),
        "k": _w((lambda *s: torch.randn(*s, dtype=torch.bfloat16) * 0.8)(B, H, Skv, Dh)),
        "v": _w((lambda *s: torch.randn(*s, dtype=torch.bfloat16) * 0.05)(B, H, Skv, Dh)),
        "e_proj": _w((lambda *s: torch.randn(*s, dtype=torch.bfloat16) * 0.8)(R, Skv) * (Skv ** -0.5)),
        "f_proj": _w((lambda *s: torch.randn(*s, dtype=torch.bfloat16) * 0.05)(R, Skv) * (Skv ** -0.5)),
    }

def reference(q, k, v, e_proj, f_proj):
    B, H, Sq, Dh = q.shape
    kp = torch.einsum("rn,bhnd->bhrd", e_proj, k)
    vp = torch.einsum("rn,bhnd->bhrd", f_proj, v)
    scores = torch.einsum("bhqd,bhrd->bhqr", q, kp) * (Dh ** -0.5)
    p = _softmax(scores, axis=-1)
    o = torch.einsum("bhqr,bhrd->bhqd", p, vp)
    return o
```

```python
import re

REG = re.compile(r"\b([vas])(?:(\d+)\b|\[(\d+):(\d+)\])")
TRANS = ("v_exp_f32", "v_log_f32", "v_rcp_f32", "v_rsq_f32", "v_sqrt_f32", "v_sin_f32", "v_cos_f32")

def regs(opnd):
    out = []
    for m in REG.finditer(opnd):
        k = m.group(1)
        if m.group(2) is not None: out.append((k, int(m.group(2))))
        else: out += [(k, i) for i in range(int(m.group(3)), int(m.group(4)) + 1)]
    if re.search(r"\bvcc\b", opnd): out += [("s", "vcc")]
    if re.search(r"\bexec\b", opnd): out += [("s", "exec")]
    if re.search(r"\bm0\b", opnd): out += [("s", "m0")]
    return out

def split_ops(rest):
    ops, depth, cur = [], 0, ""
    for ch in rest:
        if ch == "[": depth += 1
        if ch == "]": depth -= 1
        if ch == "," and depth == 0: ops.append(cur.strip()); cur = ""
        else: cur += ch
    if cur.strip(): ops.append(cur.strip())
    return ops

class Inst:
    def __init__(self, text):
        self.text = text
        t = text.split(";")[0].strip()
        parts = t.split(None, 1)
        self.op = parts[0]
        ops = split_ops(parts[1]) if len(parts) > 1 else []
        op = self.op
        self.defs, self.uses, self.srcC, self.srcAB, self.stdata = [], [], [], [], []
        self.mfma = op.startswith("v_mfma")
        self.dot = op.startswith("v_dot")
        self.valu = op.startswith("v_") and not self.mfma
        self.trans = op.replace("_e32", "").replace("_e64", "") in TRANS
        self.dpp = "_dpp" in op or "row_" in t or "quad_perm" in t
        self.permlane = op.startswith("v_permlane")
        self.readlane = op.startswith("v_readlane") or op.startswith("v_readfirstlane")
        self.vmem = op.startswith("buffer_") or op.startswith("global_")
        self.ds = op.startswith("ds_")
        self.salu = op.startswith("s_")
        self.nop = 0
        if op == "s_nop": self.nop = int(ops[0]) + 1
        R = [regs(o) for o in ops]
        if self.mfma:
            self.defs = R[0]; self.srcAB = R[1] + R[2]; self.srcC = R[3]; self.uses = self.srcAB + self.srcC
        elif self.permlane:
            self.defs = R[0] + R[1]; self.uses = R[0] + R[1]
        elif self.valu:
            self.defs = list(R[0]); self.uses = [r for x in R[1:] for r in x]
            if op.startswith("v_dot2c") or op.startswith("v_fmac"): self.uses += R[0]
            if op.startswith("v_cndmask") and len(ops) == 3: self.uses += [("s", "vcc")]
            if "_co_" in op: self.defs += R[1]
            if self.dot: self.srcC = R[3] if len(R) > 3 else R[0]
        elif self.vmem:
            if "store" in op:
                self.uses = [r for x in R for r in x]
                if "x3" in op or "x4" in op: self.stdata = R[0] if op.startswith("buffer") else R[1]
            elif "atomic" in op:
                self.uses = [r for x in R for r in x]
                if " sc0" in t: self.defs = R[0]
            elif " lds" in t or "load_lds" in op:
                self.uses = [r for x in R for r in x] + [("s", "m0")]
            elif op in ("buffer_inv", "buffer_wbl2"):
                pass
            else:
                self.defs = R[0]; self.uses = [r for x in R[1:] for r in x]
        elif self.ds:
            if op.startswith("ds_write") or (op.startswith("ds_add") and "rtn" not in op):
                self.uses = [r for x in R for r in x]
            else:
                self.defs = R[0]; self.uses = [r for x in R[1:] for r in x]
        elif self.salu:
            nodef = ("s_cmp", "s_cbranch", "s_branch", "s_waitcnt", "s_nop", "s_barrier", "s_endpgm", "s_sleep", "s_bitcmp", "s_setprio")
            if op.startswith(nodef): self.uses = [r for x in R for r in x]
            else:
                self.defs = list(R[0]) if R else []; self.uses = [r for x in R[1:] for r in x]
                if "saveexec" in op: self.defs += [("s", "exec")]

def need(p, c):
    n = 0
    pd = set(p.defs); cu = set(c.uses); cd = set(c.defs)
    vd = {r for r in pd if r[0] in "va"}; sd = {r for r in pd if r[0] == "s"}
    if p.mfma:
        passes = 8 if "32x32" in p.op else 4
        full = {4: 8, 8: 12}[passes]; part = {4: 6, 8: 10}[passes]
        if c.mfma:
            if vd & set(c.srcAB): n = max(n, full)
            if vd & set(c.srcC):
                same = (p.defs == c.srcC) and (p.op == c.op)
                if not same: n = max(n, part)
            elif vd & cd: n = max(n, full)
        elif c.valu or c.vmem or c.ds:
            if vd & (cu | cd): n = max(n, full)
        if (c.valu and not c.mfma) and set(p.srcC) & cd: n = max(n, {4: 3, 8: 7}[passes])
    if p.valu:
        if p.dot:
            if c.dot and c.op == p.op:
                if vd & (cu - set(c.srcC)): n = max(n, 3)
            elif (c.valu or c.mfma or c.vmem or c.ds) and vd & (cu | cd): n = max(n, 3)
        if c.mfma and vd & cu: n = max(n, 2)
        if c.mfma and ("s", "exec") in pd: n = max(n, 4)
        if c.dpp and vd & cu: n = max(n, 2)
        if c.dpp and ("s", "exec") in pd: n = max(n, 5)
        if c.permlane and vd & cu: n = max(n, 2)
        if c.readlane and vd & cu: n = max(n, 1)
        if p.trans and c.valu and not c.trans and vd & cu: n = max(n, 1)
        if p.trans and c.trans and vd & cu: n = max(n, 1)
        if sd:
            if (c.valu or c.mfma) and sd & cu: n = max(n, 4 if c.readlane else 2)
            if c.vmem and sd & cu: n = max(n, 5)
            if c.salu and sd & cu: n = max(n, 1)
            if c.op.startswith("s_cbranch_vcc") and ("s", "vcc") in sd: n = max(n, 2)
    if p.vmem and p.stdata and set(p.stdata) & cd and (c.valu or c.mfma or c.vmem or c.ds): n = max(n, 2)
    if p.salu and ("s", "m0") in pd and ("s", "m0") in cu and (c.vmem or c.ds): n = max(n, 1)
    return n

class Emitter:
    WIN = 24
    def __init__(self):
        self.lines = []
        self.hist = []
        self.snap = {}
        self.nops = 0
        self.count = 0
    def raw(self, text):
        self.lines.append(text)
    def _age(self, n):
        for h in self.hist: h[1] += n
        self.hist = [h for h in self.hist if h[1] < self.WIN]
    def __call__(self, text):
        for line in text.split("\n"):
            line = line.strip()
            if not line: continue
            if line.startswith(";"): self.lines.append("  " + line); continue
            if line.endswith(":"): self.label(line[:-1]); continue
            self.inst(line)
    def inst(self, line):
        c = Inst(line)
        pad = 0
        for p, age in self.hist: pad = max(pad, need(p, c) - age)
        while pad > 0:
            k = min(pad, 16)
            self.lines.append(f"  s_nop {k-1}"); self._age(k); pad -= k; self.nops += 1
        self.lines.append("  " + line); self.count += 1
        self._age(c.nop if c.nop else 1)
        if not c.nop: self.hist.append([c, 0])
        if c.op.startswith("s_cbranch") or c.op == "s_branch":
            tgt = line.split()[-1]
            self.snap.setdefault(tgt, []).append([[p, a] for p, a in self.hist])
            if c.op == "s_branch": self.hist = []
        if c.op == "s_endpgm": self.hist = []
    def label(self, name):
        self.lines.append(name + ":")
        for h in self.snap.pop(name, []): self.hist += h
    def flush(self):
        self.inst("s_nop 15")
        self.hist = []
    def text(self):
        return "\n".join(self.lines) + "\n"
```

```python
import sys, struct, math
from emit import Emitter

P = dict(X=5, XE=5, NE=0, XP="", X0=0, N0=0, first=5, pol="nt", efpol="nt", qpol="nt", stamps=0, bar=0, spin=1 << 20,
         LEAD=2, FW=2, prio=1, noE=0, noF=0, nosync="", stpol="sc1", ldpol="sc1", tpol="sc1", lead=0, merge=1,
         HB=0x100000, wsoff=0, PB0=224, LB=288)
out = sys.argv[1]
for a in sys.argv[2:]:
    k, v = a.split("="); P[k] = type(P[k])(v) if not isinstance(P[k], int) else int(v, 0)
def pol(k): return P[k].replace("+", " ")
POL, EFPOL, STPOL, LDPOL = pol("pol"), pol("efpol"), pol("stpol"), pol("ldpol")
NAME = "standalone__low_rank_proj_linformer__decode_kernel"
E = Emitter()

def srd(n): return f"s[{n}:{n+3}]"
def vr(n, k=4): return f"v[{n}:{n+k-1}]"
def ar(n, k=4): return f"a[{n}:{n+k-1}]"
SK, SV, SE, SF, SQ, SO, SD, SWS = 20, 24, 28, 32, 36, 40, 44, 48
sW, sGRP, sC, sKV, sT, sA, sB, sSELL, sSELH, sCE, sE0, sM, sSC, sO, sOP, sOUT, sDBG, sSPIN, sF0 = 3, *range(52, 70)
sNON, sSELA, sSELB, sMASK, sTOT = 94, 95, 96, 97, 98
HB = P["HB"]
OOFF = 0x40000; TOFF = 0xC0000; EPOFF = 0xD0000
L_SC = 65536; L_OL = L_SC + 16384; L_WA = L_OL + 8192; L_PB = L_WA + 8192; LDS_BYTES = L_PB + 2048

class Q:
    def __init__(s): s.n = 0; s.done = 0; s.tag = {}
    def issue(s, text, tag=None):
        E(text); s.n += 1
        if tag is not None: s.tag[tag] = s.n
    def wait(s, tag):
        idx = s.tag[tag]
        if idx <= s.done: return
        assert s.n - idx <= 63
        E(f"s_waitcnt vmcnt({s.n - idx})"); s.done = idx
    def window(s, w):
        if s.n - s.done >= w: E(f"s_waitcnt vmcnt({w-1})"); s.done = s.n - (w - 1)
    def drain(s): E("s_waitcnt vmcnt(0)"); s.done = s.n
def build_srd(n, lo, size):
    E(f"s_mov_b32 s{n}, s{lo}\ns_mov_b32 s{n+1}, s{lo+1}\ns_mov_b32 s{n+2}, {size}\ns_mov_b32 s{n+3}, 0x00020000")
def maxtree(op, dst, regsl):
    r = list(regsl)
    E(f"{op} v{dst}, v{r[0]}, v{r[1]}, v{r[2]}"); r = r[3:]
    while len(r) >= 2: E(f"{op} v{dst}, v{dst}, v{r[0]}, v{r[1]}"); r = r[2:]
    if r: E(f"{op} v{dst}, v{dst}, v{r[0]}, v{r[0]}")

EBAR = [4] + [8 * b for b in range(1, 8)]
UBAR = [8 * (8 * u + 8) + 2 for u in range(4)]
LBAR = [P["LB"]] if P["lead"] else []
PBAR = [P["PB0"], P["PB0"] + 128]
XBAR = [320, 384]
fixed = EBAR + UBAR + LBAR + PBAR + XBAR
extra = [8 * T for T in range(25, 64) if P["bar"] and T % P["bar"] == 0 and 8 * T not in fixed]
BARS = sorted(fixed + extra)

E.raw(f"; @launch grid=(256,1,1) block=(512,1,1) lds={LDS_BYTES}")
E.raw('.amdgcn_target "amdgcn-amd-amdhsa--gfx950"\n.text')
E.raw(f".globl {NAME}\n.p2align 8\n.type {NAME},@function\n{NAME}:")
E("s_load_dwordx16 s[4:19], s[0:1], 0")
if P["stamps"]: E("s_memrealtime s[90:91]")
E("s_cmp_ge_u32 s2, 256\ns_cbranch_scc1 L_done")
vL, vJ, vG = 0, 126, 127
E(f"v_lshrrev_b32 v1, 6, v0\nv_and_b32 v{vL}, 63, v0")
E(f"v_readfirstlane_b32 s{sW}, v1")
E(f"v_and_b32 v{vJ}, 15, v{vL}\nv_lshrrev_b32 v{vG}, 4, v{vL}")
E(f"s_lshr_b32 s{sGRP}, s2, 3\ns_and_b32 s{sC}, s2, 7")
E(f"s_cmp_ge_u32 s{sW}, 4\ns_cbranch_scc0 L_stream")

vD, vFA, vSC, vSCR, vL4, vOR, vOS, vOP, vOUT, vRDY, vWW, vTG1, vTGA, vTGB, vJ16, vPB = 4, 8, *range(16, 30)
S, PB, DD, WT, TMP, PL = 32, 48, 56, 64, 68, 80
aFT = 0
h = Q()
E(f"s_sub_u32 s{sW}, s{sW}, 4")
E(f"v_xor_b32 v{TMP}, v{vJ}, v{vG}\nv_lshlrev_b32 v{TMP}, 4, v{TMP}\nv_lshl_add_u32 v{vD}, v{vG}, 14, v{TMP}")
for t in range(1, 4): E(f"v_xor_b32 v{vD+t}, {t*64}, v{vD}")
E(f"s_lshl_b32 s{sF0}, s{sC}, 8\ns_lshl_b32 s{sA}, s{sW}, 18\ns_add_u32 s{sE0}, s{sF0}, s{sA}\ns_lshl_b32 s{sM}, s{sW}, 12")
E(f"s_mov_b32 s{SE+2}, {1<<20}\ns_mov_b32 s{SE+3}, 0x00020000")
E("s_waitcnt lgkmcnt(0)")
E(f"s_mov_b32 s{SE}, s10\ns_mov_b32 s{SE+1}, s11")
def e_dma(B):
    for t in range(4):
        if P["noE"]: h.tag[("D", B)] = 0; continue
        E(f"s_add_u32 m0, s{sM}, {(B % 4) * 16384 + t * 1024}")
        E(f"s_add_u32 s{sA}, s{sE0}, {t * 65536 + B * 2048}")
        h.issue(f"buffer_load_dwordx4 v{vD+t}, {srd(SE)}, s{sA} offen {EFPOL} lds", ("D", B))
e_dma(0)
E("s_branch L_helper")

E("L_stream:")
vKV, vEA, vSCW, vOW, vWA, vQ = 1, 2, 3, 4, 5, 6
RING, NSLOT = 8, 12
VBA, VBB, WA = 56, 88, 120
TB, TT, ACK = 56, 88, 96
def QR(u): return 112 + 4 * u
aE, aV = 0, 0
q = Q()
def win(k):
    T = k >> 3
    if T >= 64 - P["NE"]: return P["XE"]
    if T < P["N0"]: return P["X0"]
    if P["XP"]:
        xp = [int(c, 16) for c in P["XP"]]
        return xp[k % len(xp)]
    return P["X"]
next_load = [0]
def issue_load():
    n = next_load[0]; next_load[0] += 1
    T, i = n >> 3, n & 7
    if i == 0:
        off = ((T >> 3) & 3) * 2097152 + (T & 7) * 262144
        E(f"s_add_u32 s{sT}, s{sKV}, {off}" if off else f"s_mov_b32 s{sT}, s{sKV}")
    r = RING + (n % NSLOT) * 4
    q.issue(f"buffer_load_dwordx4 {vr(r)}, v{vKV}, {srd(SK if T < 32 else SV)}, s{sT} offen offset:{i*256} {POL}", ("ld", n))
E(f"v_lshlrev_b32 v{vQ}, 4, v{vJ}\nv_lshl_add_u32 v{vKV}, v{vG}, 13, v{vQ}")
E(f"s_lshl_b32 s{sKV}, s{sGRP}, 23\ns_lshl_b32 s{sA}, s{sC}, 15\ns_add_u32 s{sKV}, s{sKV}, s{sA}\ns_lshl_b32 s{sA}, s{sW}, 11\ns_add_u32 s{sKV}, s{sKV}, s{sA}")
E(f"s_lshl_b32 s{sB}, s{sGRP}, 10")
E(f"s_mov_b32 s{SK+2}, {1<<28}\ns_mov_b32 s{SK+3}, 0x00020000\ns_mov_b32 s{SQ+2}, 32768\ns_mov_b32 s{SQ+3}, 0x00020000")
E("s_waitcnt lgkmcnt(0)")
E(f"s_mov_b32 s{SK}, s6\ns_mov_b32 s{SK+1}, s7\ns_mov_b32 s{SQ}, s4\ns_mov_b32 s{SQ+1}, s5")
for n in range(P["first"]): issue_load()
if P["prio"]: E(f"s_setprio {P['prio']}")
E(f"v_lshlrev_b32 v7, 2, v{vG}\nv_add_u32 v7, s{sW}, v7\nv_xor_b32 v7, v7, v{vJ}\nv_lshlrev_b32 v7, 4, v7\nv_lshl_add_u32 v{vEA}, v{vJ}, 8, v7")
E(f"s_lshl_b32 s{sA}, s{sW}, 4\ns_add_u32 s{sA}, s{sA}, {L_SC}\nv_lshlrev_b32 v7, 6, v{vJ}\nv_lshl_add_u32 v7, v{vG}, 2, v7\nv_add_u32 v{vSCW}, s{sA}, v7")
E(f"s_lshl_b32 s{sA}, s{sW}, 9\ns_add_u32 s{sA}, s{sA}, {L_OL}\nv_lshlrev_b32 v7, 5, v{vJ}\nv_add_u32 v{vOW}, s{sA}, v7")
E(f"s_lshl_b32 s{sA}, s{sW}, 7\ns_add_u32 s{sA}, s{sA}, {L_WA}\nv_and_b32 v7, 1, v{vJ}\nv_lshlrev_b32 v7, 6, v7\nv_lshl_add_u32 v7, v{vG}, 4, v7\nv_add_u32 v{vWA}, s{sA}, v7")
for u in range(4): q.issue(f"buffer_load_dwordx4 {vr(QR(u))}, v{vQ}, {srd(SQ)}, s{sB} offen offset:{u*256} {pol('qpol')}", ("q", u))
build_srd(SV, 8, 1 << 28)
E(f"s_mov_b32 s{sSELL}, 0x05040100\ns_mov_b32 s{sSELH}, 0x07060302")

def vbuf(T): return VBA if (T & 1) == 0 else VBB
def v_finish(T, es):
    for e in es:
        c_ = "0" if (T & 7) == 0 else ar(aV + e * 4)
        E(f"v_mfma_f32_16x16x32_bf16 {ar(aV+e*4)}, {vr(WA+(T&1)*4)}, {vr(vbuf(T)+e*4)}, {c_}")
def v_epi(u):
    E("s_mov_b64 exec, 0xffff")
    for e in range(8): E(f"ds_write_b32 v{vOW}, a{aV + e*4 + (u & 1)} offset:{u*2048 + e*4}")
    E("s_mov_b64 exec, -1")
for k in range(512):
    T, i = k >> 3, k & 7
    if i == 0: E(f"; ---- tile {T}")
    if P["stamps"] and i == 0 and T % 8 == 0 and T: E(f"s_memrealtime s[{70+2*(T//8-1)}:{71+2*(T//8-1)}]")
    q.wait(("ld", k))
    while next_load[0] < min(512, k + win(k) + 1): issue_load()
    if k in BARS:
        E("s_waitcnt lgkmcnt(0)\ns_barrier")
    elif k in (64, 510) or (T > 32 and i == 0): E("s_waitcnt lgkmcnt(0)")
    r = RING + (k % NSLOT) * 4
    if k == 0: q.wait(("q", 3))
    if i == 0 and 0 < T <= 32:
        for kk in range(4): E(f"v_cvt_pk_bf16_f32 v{TB+kk}, v{TT+2*kk}, v{TT+2*kk+1}")
    if T > 32 and i in (0, 2, 4, 6): v_finish(T - 1, (i, i + 1))
    if T < 32:
        for c4 in range(4):
            E(f"v_dot2_f32_bf16 v{TT+i}, v{r+c4}, v{QR(T>>3)+c4}, {'0' if c4 == 0 else 'v%d' % (TT+i)}")
    if i == 0 and 0 < T <= 32:
        b_ = (T - 1) & 7
        for blk in range(4):
            c_ = "0" if b_ == 0 else vr(ACK + blk * 4)
            E(f"v_mfma_f32_16x16x32_bf16 {vr(ACK+blk*4)}, {vr(TB)}, {ar(aE+(b_*4+blk)*4)}, {c_}")
    if T >= 32 and i & 1:
        rp = RING + ((k - 1) % NSLOT) * 4
        for c4 in range(4):
            E(f"v_perm_b32 v{vbuf(T)+(2*c4)*4+(i>>1)}, v{r+c4}, v{rp+c4}, s{sSELL}")
            E(f"v_perm_b32 v{vbuf(T)+(2*c4+1)*4+(i>>1)}, v{r+c4}, v{rp+c4}, s{sSELH}")
    for d in (0, 1):
        if k - d in EBAR:
            b_ = EBAR.index(k - d)
            for blk in (2 * d, 2 * d + 1): E(f"ds_read_b128 {ar(aE + (b_*4+blk)*4)}, v{vEA} offset:{(b_ % 4)*16384 + blk*4096}")
    if k + 1 in UBAR:
        u = UBAR.index(k + 1)
        for b in range(4): E(f"v_add_f32 v{ACK+b*4}, v{ACK+b*4}, v{ACK+b*4+1}")
        for b in range(4): E(f"v_add_f32 v{ACK+b*4+2}, v{ACK+b*4+2}, v{ACK+b*4+3}")
        for b in range(4): E(f"v_add_f32 v{ACK+b*4}, v{ACK+b*4}, v{ACK+b*4+2}")
        for b in range(4): E(f"ds_write_b32 v{vSCW}, v{ACK+b*4} offset:{u*4096 + b*1024}")
    if T >= 32 and i == 3:
        E(f"ds_read_b128 {vr(WA+(T&1)*4)}, v{vWA} offset:{((T-32)>>4)*4096 + (T&7)*512}")
    if T in (40, 48, 56) and i == 7: v_epi((T - 40) >> 3)
if P["stamps"]: E("s_memrealtime s[84:85]")
v_finish(63, range(8))
v_epi(3)
if P["stamps"]:
    E(f"s_cmp_eq_u32 s{sW}, 0\ns_cbranch_scc0 L_nost\ns_waitcnt lgkmcnt(0)")
    for m, sr in enumerate((70, 72, 74, 76, 78, 80, 82, 84)): E(f"v_mov_b32 v{8+m}, s{sr}")
    E("v_mov_b32 v7, 0\nds_write_b128 v7, v[8:11]\nds_write_b128 v7, v[12:15] offset:16\nL_nost:")
E("s_waitcnt lgkmcnt(0)\ns_barrier\ns_endpgm")

E("L_helper:")
for B in range(1, P["LEAD"]): e_dma(B)
build_srd(SF, 12, 1 << 20); build_srd(SO, 14, 32768); build_srd(SD, 16, 256); build_srd(SWS, 18, (1 << 30) - P["wsoff"])
if P["wsoff"]: E(f"s_add_u32 s{SWS}, s{SWS}, {P['wsoff']}\ns_addc_u32 s{SWS+1}, s{SWS+1}, 0")
ce = struct.unpack("<I", struct.pack("<f", (128 ** -0.5) * math.log2(math.e)))[0]
E(f"s_mov_b32 s{sCE}, {ce:#x}")
E(f"s_lshl_b32 s{sDBG}, s{sGRP}, 3\ns_lshl_b32 s{sSC}, s{sGRP}, 11")
E(f"s_lshl_b32 s{sOP}, s{sGRP}, 14\ns_add_u32 s{sOP}, s{sOP}, {OOFF}")
E(f"s_lshl_b32 s{sA}, s{sW}, 12\ns_add_u32 s{sO}, s{sOP}, s{sA}\ns_add_u32 s{sO}, s{sO}, s{sF0}")
E(f"s_lshl_b32 s{sA}, s{sC}, 11\ns_add_u32 s{sOP}, s{sOP}, s{sA}")
E(f"s_lshl_b32 s{sOUT}, s{sGRP}, 10\ns_lshl_b32 s{sA}, s{sC}, 7\ns_add_u32 s{sOUT}, s{sOUT}, s{sA}")
E(f"s_lshl_b32 s{sA}, s{sW}, 14")
E(f"v_lshrrev_b32 v{TMP}, 2, v{vJ}\nv_lshl_add_u32 v{TMP}, v{vG}, 3, v{TMP}\nv_and_b32 v{TMP+1}, 3, v{vJ}\nv_lshlrev_b32 v{TMP+1}, 2, v{TMP+1}")
for hh in range(2):
    if hh: E(f"v_add_u32 v{TMP}, 4, v{TMP}")
    E(f"v_and_b32 v{TMP+2}, 15, v{TMP}\nv_xor_b32 v{TMP+2}, v{TMP+2}, v{TMP+1}\nv_lshlrev_b32 v{TMP+2}, 4, v{TMP+2}\nv_lshl_add_u32 v{TMP+2}, v{TMP}, 8, v{TMP+2}")
    E(f"v_add_u32 v{vFA+hh*4}, s{sA}, v{TMP+2}")
    for w_ in range(1, 4): E(f"v_xor_b32 v{vFA+hh*4+w_}, {w_*16}, v{vFA+hh*4}")
E(f"v_and_b32 v{TMP}, 1, v{vJ}")
if P["lead"]:
    E(f"v_lshlrev_b32 v{TMP+1}, 8, v{TMP}\nv_lshl_add_u32 v{vSC}, v{vG}, 5, v{TMP+1}")
else:
    E(f"s_mov_b32 s{sA}, {HB}\nv_mul_lo_u32 v{TMP+1}, s{sA}, v{TMP}\nv_lshrrev_b32 v{TMP+2}, 1, v{vJ}\nv_lshl_add_u32 v{TMP+1}, v{TMP+2}, 8, v{TMP+1}\nv_lshl_add_u32 v{vSC}, v{vG}, 5, v{TMP+1}")
E(f"s_lshl_b32 s{sTOT}, s{sGRP}, 10\ns_add_u32 s{sTOT}, s{sTOT}, {TOFF}")
E(f"s_mov_b32 s{sSELA}, 0x0c0c0400\ns_mov_b32 s{sSELB}, 0x04000c0c\ns_mov_b32 s{sMASK}, 0xff")
E(f"s_lshl_b32 s{sA}, s{sW}, 10\ns_add_u32 s{sA}, s{sA}, {L_WA}\nv_lshlrev_b32 v{TMP}, 6, v{TMP}\nv_lshl_add_u32 v{TMP}, v{vG}, 4, v{TMP}\nv_add_u32 v{vWW}, s{sA}, v{TMP}")
E(f"v_lshlrev_b32 v{TMP}, 6, v{vL}\nv_add_u32 v{vSCR}, {L_SC}, v{TMP}\nv_lshlrev_b32 v{vL4}, 2, v{vL}")
E(f"v_lshlrev_b32 v{TMP}, 4, v{vL}\nv_add_u32 v{vPB}, {L_PB}, v{TMP}")
E(f"s_lshl_b32 s{sA}, s{sW}, 11\ns_add_u32 s{sA}, s{sA}, {L_OL}\nv_lshlrev_b32 v{TMP}, 3, v{vL}\nv_add_u32 v{vOR}, s{sA}, v{TMP}")
E(f"v_lshrrev_b32 v{TMP}, 5, v{vL}\nv_lshlrev_b32 v{TMP}, 11, v{TMP}\nv_and_b32 v{TMP+1}, 31, v{vL}\nv_lshl_add_u32 v{vOS}, v{TMP+1}, 3, v{TMP}")
E(f"v_lshlrev_b32 v{vJ16}, 4, v{vJ}\nv_lshl_add_u32 v{vOP}, v{vG}, 8, v{vJ16}\nv_lshlrev_b32 v{vOUT}, 3, v{vJ}")
def nonce_load():
    E(f"s_or_b32 s{sA}, s{sW}, s{sC}\ns_cbranch_scc1 L_nl")
    E(f"s_lshl_b32 s{sB}, s{sGRP}, 7\ns_add_u32 s{sB}, s{sB}, {EPOFF}")
    E(f"buffer_load_dword v{vRDY}, off, {srd(SWS)}, s{sB} sc1 nt\nL_nl:")
def nonce_make():
    E(f"s_or_b32 s{sA}, s{sW}, s{sC}\ns_cbranch_scc1 L_nm")
    E(f"s_waitcnt vmcnt(0)\nv_readfirstlane_b32 s{sA}, v{vRDY}")
    E(f"s_mul_i32 s{sNON}, s{sA}, 0x9e3779b1\ns_add_u32 s{sNON}, s{sNON}, 0x7f4a7c15\ns_lshr_b32 s{sB}, s{sNON}, 15\ns_xor_b32 s{sNON}, s{sNON}, s{sB}\ns_or_b32 s{sNON}, s{sNON}, 1")
    E(f"s_xor_b32 s{sB}, s{sNON}, 2\ns_cmp_eq_u32 s{sNON}, s{sA}\ns_cselect_b32 s{sNON}, s{sB}, s{sNON}")
    E(f"v_mov_b32 v{vRDY}, s{sNON}\ns_lshl_b32 s{sB}, s{sGRP}, 7\ns_add_u32 s{sB}, s{sB}, {EPOFF}\ns_mov_b64 exec, 1")
    E(f"buffer_store_dword v{vRDY}, off, {srd(SD)}, s{sDBG} sc1\nbuffer_store_dword v{vRDY}, off, {srd(SWS)}, s{sB} sc1")
    E("s_mov_b64 exec, -1\nL_nm:")
def nonce_get():
    E(f"s_mov_b32 s{sSPIN}, {P['spin']}\nL_rdy:")
    E(f"buffer_load_dword v{vRDY}, off, {srd(SD)}, s{sDBG} sc1\ns_waitcnt vmcnt(0)")
    E(f"v_readfirstlane_b32 s{sNON}, v{vRDY}\ns_cmp_lg_u32 s{sNON}, 0\ns_cbranch_scc1 L_rdy_ok")
    E(f"s_sleep 8\ns_sub_u32 s{sSPIN}, s{sSPIN}, 1\ns_cbranch_scc0 L_rdy\nL_rdy_ok:")
    h.done = h.n
    E(f"v_and_b32 v{TMP}, 3, v{vL}\nv_lshlrev_b32 v{TMP}, 3, v{TMP}\nv_lshrrev_b32 v{vTG1}, v{TMP}, v{vRDY}")
    E(f"v_and_b32 v{TMP}, 1, v{vL}\nv_lshlrev_b32 v{TMP}, 4, v{TMP}\nv_lshrrev_b32 v{vTGA}, v{TMP}, v{vRDY}\nv_lshrrev_b32 v{vTGB}, 8, v{vTGA}")
def tag_check(r, n):
    for m in range(n):
        E(f"v_perm_b32 v{TMP+2*m}, v{r+4*m+1}, v{r+4*m}, s{sSELA}\nv_perm_b32 v{TMP+2*m+1}, v{r+4*m+3}, v{r+4*m+2}, s{sSELB}")
    for m in range(n): E(f"v_or_b32 v{TMP+2*m}, v{TMP+2*m}, v{TMP+2*m+1}")
    for m in range(n): E(f"v_xor_b32 v{TMP+2*m}, s{sNON}, v{TMP+2*m}")
    for m in range(1, n): E(f"v_or_b32 v{TMP}, v{TMP}, v{TMP+2*m}")
    E(f"v_cmp_ne_u32 vcc, 0, v{TMP}")
def untag(r, n):
    for m in range(n): E(f"v_and_b32 v{r+m}, 0xffffff00, v{r+m}")
def gather8(name, soff, pl, sleep):
    E(f"s_mov_b32 s{sSPIN}, {P['spin']}\nL_poll{name}:")
    E(f"buffer_load_dwordx4 {vr(PL)}, v{vOP}, {srd(SWS)}, s{soff} offen {pl}")
    E(f"buffer_load_dwordx4 {vr(PL+4)}, v{vOP}, {srd(SWS)}, s{soff} offen offset:1024 {pl}")
    E("s_waitcnt vmcnt(0)")
    tag_check(PL, 2)
    if sleep:
        E(f"s_cbranch_vccz L_got{name}\ns_sleep 8\ns_sub_u32 s{sSPIN}, s{sSPIN}, 1\ns_cbranch_scc0 L_poll{name}\nL_got{name}:")
    else:
        E(f"s_sub_u32 s{sSPIN}, s{sSPIN}, 1\ns_cbranch_scc1 L_got{name}\ns_cbranch_vccnz L_poll{name}\nL_got{name}:")
    untag(PL, 8)
    for m in range(4): E(f"v_add_f32 v{PL+m}, v{PL+m}, v{PL+4+m}")
    for sw in ("v_permlane32_swap_b32", "v_permlane16_swap_b32"):
        for m in range(4): E(f"v_mov_b32 v{PL+4+m}, v{PL+m}")
        for m in range(4): E(f"{sw} v{PL+4+m}, v{PL+m}")
        for m in range(4): E(f"v_add_f32 v{PL+m}, v{PL+4+m}, v{PL+m}")
def publish(us):
    E(f"s_cmp_eq_u32 s{sW}, {us[-1]}\ns_cbranch_scc0 L_pub{us[-1]}")
    for n, u in enumerate(us):
        for m in range(4): E(f"ds_read_b128 {vr(S+m*4)}, v{vSCR} offset:{u*4096 + m*16}")
        E("s_waitcnt lgkmcnt(0)")
        for st in (8, 4, 2):
            for m in range(st): E(f"v_add_f32 v{S+m}, v{S+m}, v{S+m+st}")
        E(f"v_add_f32 v{WT+n}, v{S}, v{S+1}\nv_bfi_b32 v{WT+n}, s{sMASK}, v{vTG1}, v{WT+n}")
    for n, u in enumerate(us):
        E(f"s_add_u32 s{sA}, s{sSC}, {(u & 1) * HB + (u >> 1) * 65536}\ns_add_u32 s{sA}, s{sA}, s{sF0}")
        if "s" not in P["nosync"]: E(f"buffer_store_dword v{WT+n}, v{vL4}, {srd(SWS)}, s{sA} offen {STPOL}")
    E(f"L_pub{us[-1]}:")
def leader(ev):
    if "l" in P["nosync"] or not P["lead"]: return
    E(f"s_and_b32 s{sA}, s{sC}, 5\ns_lshl_b32 s{sB}, s{sW}, 3\ns_or_b32 s{sA}, s{sA}, s{sB}\ns_cmp_eq_u32 s{sA}, {4*ev}\ns_cbranch_scc0 L_ld{ev}")
    E(f"s_bfe_u32 s{sT}, s{sC}, 0x10001\ns_mul_i32 s{sT}, s{sT}, {HB}\ns_add_u32 s{sT}, s{sT}, s{sSC}\ns_add_u32 s{sT}, s{sT}, {ev*65536}")
    gather8(f"L{ev}", sT, LDPOL, True)
    for m in range(4):
        E(f"s_lshr_b32 s{sA}, s{sNON}, {8*m}\nv_mov_b32 v{TMP+m}, s{sA}\nv_bfi_b32 v{PL+m}, s{sMASK}, v{TMP+m}, v{PL+m}")
    E(f"s_lshl_b32 s{sT}, s{sC}, 7\ns_add_u32 s{sT}, s{sT}, s{sTOT}\ns_mov_b64 exec, 0xffff")
    E(f"buffer_store_dwordx4 {vr(PL)}, v{vJ16}, {srd(SWS)}, s{sT} offen {pol('tpol')}\ns_mov_b64 exec, -1\nL_ld{ev}:")
def f_block(bb):
    E(f"s_lshl_b32 s{sB}, s{sW}, 12\ns_add_u32 s{sB}, s{sB}, s{sF0}\ns_lshl_b32 s{sT}, s{sW}, 14")
    for t in range(16):
        if P["noF"]: continue
        h.window(P["FW"])
        E(f"s_add_u32 m0, s{sT}, {t*1024}\ns_add_u32 s{sA}, s{sB}, {t*65536 + bb*2048}")
        h.issue(f"buffer_load_dwordx4 v{vD+(t&3)}, {srd(SF)}, s{sA} offen {EFPOL} lds")
    h.drain()
    for w_ in range(4):
        for hb in range(2):
            for ks in range(2):
                for hh in range(2):
                    E(f"ds_read_b64_tr_b16 {ar(aFT + (((bb*4+w_)*2+hb)*2+ks)*4 + hh*2, 2)}, v{vFA+hh*4+w_} offset:{ks*8192 + hb*8}")
        E("s_waitcnt lgkmcnt(0)")
def xg(op, r):
    for sw in ("v_permlane32_swap_b32", "v_permlane16_swap_b32"):
        E(f"v_mov_b32 v{TMP+1}, v{r}\n{sw} v{TMP+1}, v{r}\n{op} v{r}, v{TMP+1}, v{r}")
def softmax(ev):
    E(f"s_cmp_eq_u32 s{sW}, 0\ns_cbranch_scc0 L_sm{ev}")
    if "l" not in P["nosync"]:
        if P["lead"]: E(f"s_add_u32 s{sA}, s{sTOT}, {ev*512}")
        else: E(f"s_add_u32 s{sA}, s{sSC}, {ev*65536}")
        E(f"s_mov_b32 s{sSPIN}, {P['spin']}\nL_sc{ev}:")
        for m, o in enumerate((0, 16, 128, 144)): E(f"buffer_load_dwordx4 {vr(S+m*4)}, v{vSC}, {srd(SWS)}, s{sA} offen offset:{o} {LDPOL}")
        E("s_waitcnt vmcnt(0)")
        tag_check(S, 4)
        E(f"s_cbranch_vccz L_sc_ok{ev}\ns_sleep 8\ns_sub_u32 s{sSPIN}, s{sSPIN}, 1\ns_cbranch_scc0 L_sc{ev}\nL_sc_ok{ev}:")
    untag(S, 16)
    if not P["lead"]:
        for ctl in ("quad_perm:[2,3,0,1]", "row_ror:4", "row_ror:8"):
            for m in range(16): E(f"v_add_f32_dpp v{S+m}, v{S+m}, v{S+m} {ctl} row_mask:0xf bank_mask:0xf")
    maxtree("v_max3_f32", TMP + 2, range(S, S + 16)); xg("v_max_f32", TMP + 2)
    E(f"v_mul_f32 v{TMP+2}, s{sCE}, v{TMP+2}")
    for m in range(16): E(f"v_fma_f32 v{S+m}, v{S+m}, s{sCE}, -v{TMP+2}")
    for m in range(16): E(f"v_exp_f32 v{S+m}, v{S+m}")
    for m in range(4): E(f"v_add_f32 v{TMP+4+m}, v{S+m}, v{S+m+4}")
    for m in range(4): E(f"v_add_f32 v{TMP+8+m}, v{S+m+8}, v{S+m+12}")
    for m in range(4): E(f"v_add_f32 v{TMP+4+m}, v{TMP+4+m}, v{TMP+8+m}")
    E(f"v_add_f32 v{TMP+4}, v{TMP+4}, v{TMP+5}\nv_add_f32 v{TMP+6}, v{TMP+6}, v{TMP+7}\nv_add_f32 v{TMP+3}, v{TMP+4}, v{TMP+6}")
    xg("v_add_f32", TMP + 3)
    E(f"v_rcp_f32 v{TMP+3}, v{TMP+3}")
    for m in range(16): E(f"v_mul_f32 v{S+m}, v{S+m}, v{TMP+3}")
    for m in range(8): E(f"v_cvt_pk_bf16_f32 v{PB+m}, v{S+2*m}, v{S+2*m+1}")
    E(f"ds_write_b128 v{vPB}, {vr(PB)}\nds_write_b128 v{vPB}, {vr(PB+4)} offset:1024\ns_waitcnt lgkmcnt(0)\nL_sm{ev}:")
def weights(ev):
    E(f"ds_read_b128 {vr(PB)}, v{vPB}\nds_read_b128 {vr(PB+4)}, v{vPB} offset:1024")
    E("s_mov_b32 s100, 0x00030003\ns_mov_b32 s101, 0x00030003\ns_waitcnt lgkmcnt(0)")
    for bb in range(2):
        for w_ in range(4):
            for ks in range(2):
                for hb in range(2):
                    c_ = "0" if ks == 0 else vr(DD + hb * 4)
                    E(f"v_mfma_f32_16x16x32_bf16 {vr(DD+hb*4)}, {ar(aFT + (((bb*4+w_)*2+hb)*2+ks)*4)}, {vr(PB+ks*4)}, {c_}")
            for kk in range(4): E(f"v_cvt_pk_bf16_f32 v{WT+kk}, v{DD+2*kk}, v{DD+2*kk+1}")
            E(f"s_mov_b64 exec, s[100:101]\nds_write_b128 v{vWW}, {vr(WT)} offset:{ev*4096 + bb*512 + w_*128}\ns_mov_b64 exec, -1")
    E("s_waitcnt lgkmcnt(0)")
nonce_load()
for k in BARS:
    if k in EBAR:
        B = EBAR.index(k)
        h.wait(("D", B))
        E("s_barrier")
        if B == 0: nonce_make()
        if B + P["LEAD"] < 8: e_dma(B + P["LEAD"])
        if B == 7: nonce_get()
    elif k in UBAR:
        u = UBAR.index(k)
        E("s_barrier")
        if not P["merge"]: publish([u])
        elif u & 1: publish([u - 1, u])
        if u < 2: f_block(u)
        if u == 1: leader(0)
        if u == 2: softmax(0)
    elif k in LBAR:
        E("s_barrier"); leader(1)
    elif k in PBAR:
        E("s_barrier"); weights(PBAR.index(k))
    elif k == 320:
        E("s_barrier"); softmax(1)
    else:
        E("s_barrier")
E("s_barrier")
for w_ in range(4): E(f"ds_read_b64 {vr(S+w_*2, 2)}, v{vOR} offset:{w_*512}")
E("s_waitcnt lgkmcnt(0)")
E(f"v_add_f32 v{S}, v{S}, v{S+2}\nv_add_f32 v{S+1}, v{S+1}, v{S+3}\nv_add_f32 v{S+4}, v{S+4}, v{S+6}\nv_add_f32 v{S+5}, v{S+5}, v{S+7}")
E(f"v_add_f32 v{S}, v{S}, v{S+4}\nv_add_f32 v{S+1}, v{S+1}, v{S+5}\nv_bfi_b32 v{S}, s{sMASK}, v{vTGA}, v{S}\nv_bfi_b32 v{S+1}, s{sMASK}, v{vTGB}, v{S+1}")
E(f"buffer_store_dwordx2 {vr(S, 2)}, v{vOS}, {srd(SWS)}, s{sO} offen sc1")
E(f"s_cmp_eq_u32 s{sW}, 0\ns_cbranch_scc0 L_done")
if P["stamps"]: E("s_memrealtime s[86:87]")
gather8("O", sOP, "sc1", False)
E(f"v_cvt_pk_bf16_f32 v{PL+4}, v{PL}, v{PL+1}\nv_cvt_pk_bf16_f32 v{PL+5}, v{PL+2}, v{PL+3}")
E("s_mov_b64 exec, 0xffff")
E(f"buffer_store_dwordx2 {vr(PL+4, 2)}, v{vOUT}, {srd(SO)}, s{sOUT} offen")
if P["stamps"]:
    E("s_waitcnt vmcnt(0)\ns_memrealtime s[92:93]\ns_getreg_b32 s88, hwreg(HW_REG_XCC_ID)")
    E(f"v_mov_b32 v{TMP}, 0\nds_read_b128 v[104:107], v{TMP}\nds_read_b128 v[108:111], v{TMP} offset:16\ns_waitcnt lgkmcnt(0)")
    E("s_sub_u32 s86, s86, s90")
    for m in range(8): E(f"v_subrev_u32 v{104+m}, s90, v{104+m}")
    for m, sr in enumerate((90, 91, 92, 93, 88, 84, 86, sSPIN)): E(f"v_mov_b32 v{96+m}, s{sr}")
    E("v_mov_b32 v101, v111")
    build_srd(SWS, 18, 1 << 30)
    E(f"s_lshl_b32 s{sA}, s2, 6\ns_add_u32 s{sA}, s{sA}, 0x20000000\ns_mov_b64 exec, 1")
    for m in range(4): E(f"buffer_store_dwordx4 {vr(96+m*4)}, off, {srd(SWS)}, s{sA} offset:{m*16}")
E("L_done:\ns_endpgm")
E.raw('.section .rodata,"a"\n.p2align 6')
E.raw(f""".amdhsa_kernel {NAME}
  .amdhsa_next_free_vgpr 256
  .amdhsa_next_free_sgpr 102
  .amdhsa_accum_offset 128
  .amdhsa_group_segment_fixed_size 0
  .amdhsa_float_denorm_mode_32 3
  .amdhsa_kernarg_size 64
  .amdhsa_user_sgpr_count 2
  .amdhsa_user_sgpr_kernarg_segment_ptr 1
  .amdhsa_system_sgpr_workgroup_id_x 1
.end_amdhsa_kernel""")
open(out, "w").write(E.text())
print(out, "instructions", E.count, "auto nops", E.nops, file=sys.stderr)
```

```python
import sys, struct, math
from emit import Emitter

P = dict(X=5, XE=5, NE=0, XP="", X0=0, N0=0, first=5, pol="nt", efpol="nt", qpol="nt", stamps=0, bar=0, spin=1 << 20,
         LEAD=2, FW=3, prio=1, noE=0, noF=0, nosync="", stpol="sc1", ldpol="sc1", tpol="sc1", lead=0, merge=1,
         HB=0x100000, wsoff=0, PB0=224, LB=288, crot=0, hst=0, FB="12", pf="", pfpol="", pfat=-1, psleep=0, X1="", N1=0, opol="sc1", pk=0, ph=0, D1=4, D0=4, late=1, early1=1, pfE="-", pfF="-", fine="", qlate=1, SB=-1, eflat=0, ereg=0, XE1=6, NE1=0, outpol="")
out = sys.argv[1]
for a in sys.argv[2:]:
    k, v = a.split("="); P[k] = type(P[k])(v) if not isinstance(P[k], int) else int(v, 0)
def pol(k): return P[k].replace("+", " ")
POL, EFPOL, STPOL, LDPOL = pol("pol"), pol("efpol"), pol("stpol"), pol("ldpol")
NAME = "standalone__low_rank_proj_linformer__decode_kernel"
E = Emitter()

def srd(n): return f"s[{n}:{n+3}]"
def vr(n, k=4): return f"v[{n}:{n+k-1}]"
def ar(n, k=4): return f"a[{n}:{n+k-1}]"
SK, SV, SE, SF, SQ, SO, SD, SWS = 20, 24, 28, 32, 36, 40, 44, 48
sW, sGRP, sC, sKV, sT, sA, sB, sSELL, sSELH, sCE, sE0, sM, sSC, sO, sOP, sOUT, sDBG, sSPIN, sF0 = 3, *range(52, 70)
sNON, sSELA, sSELB, sMASK, sTOT = 94, 95, 96, 97, 98
HB = P["HB"]
OOFF = 0x40000; TOFF = 0xC0000; EPOFF = 0xD0000
L_SC = 65536; L_OL = L_SC + 16384; L_WA = L_OL + 8192; L_PB = L_WA + 8192; LDS_BYTES = L_PB + 2048

class Q:
    def __init__(s): s.n = 0; s.done = 0; s.tag = {}
    def issue(s, text, tag=None):
        E(text); s.n += 1
        if tag is not None: s.tag[tag] = s.n
    def wait(s, tag):
        idx = s.tag[tag]
        if idx <= s.done: return
        assert s.n - idx <= 63
        E(f"s_waitcnt vmcnt({s.n - idx})"); s.done = idx
    def window(s, w):
        if s.n - s.done >= w: E(f"s_waitcnt vmcnt({w-1})"); s.done = s.n - (w - 1)
    def drain(s): E("s_waitcnt vmcnt(0)"); s.done = s.n
def build_srd(n, lo, size):
    E(f"s_mov_b32 s{n}, s{lo}\ns_mov_b32 s{n+1}, s{lo+1}\ns_mov_b32 s{n+2}, {size}\ns_mov_b32 s{n+3}, 0x00020000")
def maxtree(op, dst, regsl):
    r = list(regsl)
    E(f"{op} v{dst}, v{r[0]}, v{r[1]}, v{r[2]}"); r = r[3:]
    while len(r) >= 2: E(f"{op} v{dst}, v{dst}, v{r[0]}, v{r[1]}"); r = r[2:]
    if r: E(f"{op} v{dst}, v{dst}, v{r[0]}, v{r[0]}")

EBAR = [12, 28, 44, 60] if P["late"] else [4, 16, 32, 48]
G1, W1 = (8192, 16384) if P["pk"] else (16384, 8192)
CB, BB_ = (1, 8) if P["ph"] else (4, 1)
UBAR = [8 * (8 * u + 8) + 2 for u in range(4)]
LBAR = [P["LB"]] if P["lead"] else []
PBAR = [P["PB0"], P["PB0"] + 128]
XBAR = [320, 384]
SBAR = [P["SB"]] if P["SB"] >= 0 else []
fixed = SBAR + EBAR + UBAR + LBAR + PBAR + XBAR
extra = [8 * T for T in range(25, 64) if P["bar"] and T % P["bar"] == 0 and 8 * T not in fixed]
BARS = sorted(fixed + extra)

E.raw(f"; @launch grid=(256,1,1) block=(512,1,1) lds={LDS_BYTES}")
E.raw('.amdgcn_target "amdgcn-amd-amdhsa--gfx950"\n.text')
E.raw(f".globl {NAME}\n.p2align 8\n.type {NAME},@function\n{NAME}:")
E("s_load_dwordx16 s[4:19], s[0:1], 0")
if P["stamps"]: E("s_memrealtime s[90:91]")
E("s_cmp_ge_u32 s2, 256\ns_cbranch_scc1 L_done")
vL, vJ, vG = 0, 126, 127
E(f"v_lshrrev_b32 v1, 6, v0\nv_and_b32 v{vL}, 63, v0")
E(f"v_readfirstlane_b32 s{sW}, v1")
E(f"v_and_b32 v{vJ}, 15, v{vL}\nv_lshrrev_b32 v{vG}, 4, v{vL}")
E(f"s_lshr_b32 s{sGRP}, s2, 3\ns_and_b32 s{sC}, s2, 7")
E(f"s_cmp_ge_u32 s{sW}, 4\ns_cbranch_scc0 L_stream")

vD, vFA, vSC, vSCR, vL4, vOR, vOS, vOP, vOUT, vRDY, vWW, vTG1, vTGA, vTGB, vJ16, vPB = 4, 12, *range(16, 30)
S, PB, DD, WT, TMP, PL = 32, 48, 56, 64, 68, 80
aFT = 0
h = Q()
E(f"s_sub_u32 s{sW}, s{sW}, 4")
E(f"v_lshrrev_b32 v{TMP+1}, 5, v{vL}\nv_and_b32 v{TMP}, 31, v{vL}\nv_xor_b32 v{TMP}, v{TMP}, v{TMP+1}\nv_lshlrev_b32 v{TMP}, 4, v{TMP}\nv_lshl_add_u32 v{vD}, v{TMP+1}, 14, v{TMP}")
if P["eflat"]: E(f"v_lshlrev_b32 v{vD}, 4, v{vL}")
for t in range(1, 8): E(f"v_xor_b32 v{vD+t}, {t*32}, v{vD}")
E(f"s_lshl_b32 s{sF0}, s{sC}, 8\ns_mul_i32 s{sB}, s{sC}, {CB*512}\ns_lshl_b32 s{sA}, s{sW}, 18\ns_add_u32 s{sE0}, s{sB}, s{sA}\ns_lshl_b32 s{sM}, s{sW}, 13")
E(f"s_mov_b32 s{SE+2}, {1<<20}\ns_mov_b32 s{SE+3}, 0x00020000")
E("s_waitcnt lgkmcnt(0)")
E(f"s_mov_b32 s{SE}, s10\ns_mov_b32 s{SE+1}, s11")
def e_dma(B):
    for t in range(8):
        if P["noE"]: h.tag[("D", B)] = 0; continue
        if P["D1" if B else "D0"]: h.window(P["D1" if B else "D0"])
        E(f"s_add_u32 m0, s{sM}, {(B & 1) * 32768 + t * 1024}")
        E(f"s_add_u32 s{sA}, s{sE0}, {t * 32768 + B * BB_ * 512}")
        if P["eflat"]: E(f"s_mov_b32 s{sA}, {(P['eflat']-1) * (B*8+t) * 1024}")
        if P["ereg"]: h.issue(f"buffer_load_dwordx4 {vr(88+t*4)}, v{vD+t}, {srd(SE)}, s{sA} offen {EFPOL}", ("D", B))
        else: h.issue(f"buffer_load_dwordx4 v{vD+t}, {srd(SE)}, s{sA} offen {EFPOL} lds", ("D", B))
def l2_touch(sr, pl, reg):
    assert not P["ph"]
    E(f"s_lshl_b32 s{sA}, s{sGRP}, 15\ns_lshr_b32 s{sB}, s{sW}, 1\ns_lshl_b32 s{sB}, s{sB}, 14\ns_add_u32 s{sA}, s{sA}, s{sB}")
    E(f"s_and_b32 s{sB}, s{sW}, 1\ns_lshl_b32 s{sB}, s{sB}, 10\ns_add_u32 s{sA}, s{sA}, s{sB}\ns_lshl_b32 s{sB}, s{sC}, 11\ns_add_u32 s{sA}, s{sA}, s{sB}")
    E(f"v_lshlrev_b32 v{TMP}, 4, v{vL}")
    h.issue(f"buffer_load_dwordx4 {vr(reg)}, v{TMP}, {srd(sr)}, s{sA} offen {pl.replace('+', ' ')}")
if P["pfE"] != "-": l2_touch(SE, P["pfE"], PL + 8)
if not SBAR: e_dma(0)
E("s_branch L_helper")

E("L_stream:")
vKV, vEA, vSCW, vOW, vWA, vQ = 1, 2, 3, 4, 5, 6
TB2 = 64
vEB = 60
RING, NSLOT = 8, 12
VBA, VBB, WA = 56, 88, 120
TB, TT, ACK = 56, 88, 96
def QR(u): return 112 + 4 * u
aE, aV = 0, 0
q = Q()
def win(k):
    T = k >> 3
    if T >= 64 - P["NE"]: return P["XE"]
    if T >= 64 - P["NE1"]: return P["XE1"]
    if T < P["N0"]: return P["X0"]
    if T < P["N1"]:
        xp = [int(c, 16) for c in P["X1"]]
        return xp[k % len(xp)]
    if P["XP"]:
        xp = [int(c, 16) for c in P["XP"]]
        return xp[k % len(xp)]
    return P["X"]
next_load = [0]
def issue_load():
    n = next_load[0]; next_load[0] += 1
    T, i = n >> 3, n & 7
    if i == 0:
        off = ((T >> 3) & 3) * 2097152 + (T & 1) * 4096 + ((T & 7) >> 1) * BB_ * 65536
        E(f"s_add_u32 s{sT}, s{sKV}, {off}" if off else f"s_mov_b32 s{sT}, s{sKV}")
    r = RING + (n % NSLOT) * 4
    q.issue(f"buffer_load_dwordx4 {vr(r)}, v{vKV}, {srd(SK if T < 32 else SV)}, s{sT} offen offset:{i*256} {POL}", ("ld", n))
E(f"v_lshlrev_b32 v{vQ}, 4, v{vJ}\nv_and_b32 v7, 1, v{vG}\nv_lshl_add_u32 v{vKV}, v7, 15, v{vQ}\nv_lshrrev_b32 v2, 1, v{vG}\nv_lshl_add_u32 v{vKV}, v2, {G1.bit_length()-1}, v{vKV}")
E(f"s_lshl_b32 s{sKV}, s{sGRP}, 23\ns_mul_i32 s{sA}, s{sC}, {CB*65536}\ns_add_u32 s{sKV}, s{sKV}, s{sA}")
E(f"s_and_b32 s{sE0}, s{sW}, 1\ns_lshl_b32 s{sA}, s{sE0}, 11\ns_add_u32 s{sKV}, s{sKV}, s{sA}\ns_lshr_b32 s{sM}, s{sW}, 1\ns_lshl_b32 s{sA}, s{sM}, {W1.bit_length()-1}\ns_add_u32 s{sKV}, s{sKV}, s{sA}")
E(f"s_lshl_b32 s{sB}, s{sGRP}, 10")
E(f"s_mov_b32 s{SK+2}, {1<<28}\ns_mov_b32 s{SK+3}, 0x00020000\ns_mov_b32 s{SQ+2}, 32768\ns_mov_b32 s{SQ+3}, 0x00020000")
E("s_waitcnt lgkmcnt(0)")
E(f"s_mov_b32 s{SK}, s6\ns_mov_b32 s{SK+1}, s7\ns_mov_b32 s{SQ}, s4\ns_mov_b32 s{SQ+1}, s5")
for n in range(P["first"]): issue_load()
if P["prio"]: E(f"s_setprio {P['prio']}")
E(f"s_mul_i32 s{sA}, s{sM}, {W1//2048}\ns_add_u32 s{sA}, s{sA}, s{sE0}\nv_lshlrev_b32 v7, 4, v7\nv_lshl_add_u32 v7, v2, {(G1//2048).bit_length()-1}, v7\nv_add_u32 v7, s{sA}, v7")
E(f"v_xor_b32 v7, v7, v{vJ}\nv_lshlrev_b32 v7, 4, v7\nv_lshl_add_u32 v{vEA}, v{vJ}, 9, v7\nv_xor_b32 v{vEB}, 32, v{vEA}")
E(f"s_lshl_b32 s{sA}, s{sW}, 4\ns_add_u32 s{sA}, s{sA}, {L_SC}\nv_lshlrev_b32 v7, 6, v{vJ}\nv_lshl_add_u32 v7, v{vG}, 2, v7\nv_add_u32 v{vSCW}, s{sA}, v7")
E(f"s_lshl_b32 s{sA}, s{sW}, 9\ns_add_u32 s{sA}, s{sA}, {L_OL}\nv_lshlrev_b32 v7, 5, v{vJ}\nv_add_u32 v{vOW}, s{sA}, v7")
E(f"s_lshl_b32 s{sA}, s{sW}, 7\ns_add_u32 s{sA}, s{sA}, {L_WA}\nv_and_b32 v7, 1, v{vJ}\nv_lshlrev_b32 v7, 6, v7\nv_lshl_add_u32 v7, v{vG}, 4, v7\nv_add_u32 v{vWA}, s{sA}, v7")
for u in range(4): q.issue(f"buffer_load_dwordx4 {vr(QR(u))}, v{vQ}, {srd(SQ)}, s{sB} offen offset:{u*256} {pol('qpol')}", ("q", u))
build_srd(SV, 8, 1 << 28)
E(f"s_mov_b32 s{sSELL}, 0x05040100\ns_mov_b32 s{sSELH}, 0x07060302")

def vbuf(T): return VBA if (T & 1) == 0 else VBB
def v_finish(T, es):
    for e in es:
        c_ = "0" if (T & 7) == 0 else ar(aV + e * 4)
        E(f"v_mfma_f32_16x16x32_bf16 {ar(aV+e*4)}, {vr(WA+(T&1)*4)}, {vr(vbuf(T)+e*4)}, {c_}")
def v_epi(u):
    E("s_mov_b64 exec, 0xffff")
    for e in range(8): E(f"ds_write_b32 v{vOW}, a{aV + e*4 + (u & 1)} offset:{u*2048 + e*4}")
    E("s_mov_b64 exec, -1")
for k in range(512):
    T, i = k >> 3, k & 7
    if i == 0: E(f"; ---- tile {T}")
    if P["stamps"] and not P["fine"] and i == 0 and T % 8 == 0 and T: E(f"s_memrealtime s[{70+2*(T//8-1)}:{71+2*(T//8-1)}]")
    q.wait(("ld", k))
    if P["fine"]:
        fs = [int(x) for x in P["fine"].split(",")]
        if k in fs: E(f"s_memrealtime s[{70+2*fs.index(k)}:{71+2*fs.index(k)}]")
    while next_load[0] < min(512, k + win(k) + 1): issue_load()
    if k in BARS:
        E("s_waitcnt lgkmcnt(0)\ns_barrier")
    elif k in ((16, 32, 48, 64, 510) if P["late"] else (8, 24, 40, 56, 510)) or (T > 32 and i == 0): E("s_waitcnt lgkmcnt(0)")
    r = RING + (k % NSLOT) * 4
    QL = P["first"] if P["qlate"] else 0
    assert not (k <= QL and next_load[0] > NSLOT), "ring slot reused before its row was consumed"
    assert next_load[0] - 1 - NSLOT < (k if T < 32 else k & ~1) or k <= QL
    if k == QL: q.wait(("q", 3))
    if i == 0 and 0 < T <= 32:
        held = P["late"] and T <= 8 and T & 1
        for kk in range(4): E(f"v_cvt_pk_bf16_f32 v{(TB2 if held else TB)+kk}, v{TT+2*kk}, v{TT+2*kk+1}")
    if T > 32 and i in (0, 2, 4, 6): v_finish(T - 1, (i, i + 1))
    if T < 32:
        for kk in ([] if k < QL else range(k + 1) if k == QL else [k]):
            for c4 in range(4):
                E(f"v_dot2_f32_bf16 v{TT+(kk&7)}, v{RING+(kk%NSLOT)*4+c4}, v{QR(T>>3)+c4}, {'0' if c4 == 0 else 'v%d' % (TT+(kk&7))}")
    if i == 0 and 0 < T <= 32:
        todo = [((T - 1) & 7, TB)]
        if P["late"] and T <= 8: todo = [] if T & 1 else [(T - 2, TB2), (T - 1, TB)]
        for b_, tb in todo:
            for blk in range(4):
                c_ = "0" if b_ == 0 else vr(ACK + blk * 4)
                E(f"v_mfma_f32_16x16x32_bf16 {vr(ACK+blk*4)}, {vr(tb)}, {ar(aE+(b_*4+blk)*4)}, {c_}")
    if T >= 32 and i & 1:
        rp = RING + ((k - 1) % NSLOT) * 4
        for c4 in range(4):
            E(f"v_perm_b32 v{vbuf(T)+(2*c4)*4+(i>>1)}, v{r+c4}, v{rp+c4}, s{sSELL}")
            E(f"v_perm_b32 v{vbuf(T)+(2*c4+1)*4+(i>>1)}, v{r+c4}, v{rp+c4}, s{sSELH}")
    for d in range(4):
        if k - d in EBAR:
            B = EBAR.index(k - d); b0 = d >> 1
            for blk in (2 * (d & 1), 2 * (d & 1) + 1):
                E(f"ds_read_b128 {ar(aE + ((2*B+b0)*4+blk)*4)}, v{vEB if b0 else vEA} offset:{(B & 1)*32768 + blk*8192}")
    if k + 1 in UBAR:
        u = UBAR.index(k + 1)
        for b in range(4): E(f"v_add_f32 v{ACK+b*4}, v{ACK+b*4}, v{ACK+b*4+1}")
        for b in range(4): E(f"v_add_f32 v{ACK+b*4+2}, v{ACK+b*4+2}, v{ACK+b*4+3}")
        for b in range(4): E(f"v_add_f32 v{ACK+b*4}, v{ACK+b*4}, v{ACK+b*4+2}")
        for b in range(4): E(f"ds_write_b32 v{vSCW}, v{ACK+b*4} offset:{u*4096 + b*1024}")
    if T >= 32 and i == 3:
        E(f"ds_read_b128 {vr(WA+(T&1)*4)}, v{vWA} offset:{((T-32)>>4)*4096 + (T&7)*512}")
    if T in (40, 48, 56) and i == 7: v_epi((T - 40) >> 3)
if P["stamps"]: E("s_memrealtime s[84:85]")
v_finish(63, range(8))
v_epi(3)
if P["stamps"]:
    E(f"s_cmp_eq_u32 s{sW}, 0\ns_cbranch_scc0 L_nost\ns_waitcnt lgkmcnt(0)")
    for m, sr in enumerate((70, 72, 74, 76, 78, 80, 82, 84)): E(f"v_mov_b32 v{8+m}, s{sr}")
    E("v_mov_b32 v7, 0\nds_write_b128 v7, v[8:11]\nds_write_b128 v7, v[12:15] offset:16\nL_nost:")
E("s_waitcnt lgkmcnt(0)\ns_barrier\ns_endpgm")

E("L_helper:")
if P["late"] and P["early1"] and not SBAR: e_dma(1)
build_srd(SF, 12, 1 << 20); build_srd(SO, 14, 32768); build_srd(SWS, 18, (1 << 30) - P["wsoff"])
if P["wsoff"]: E(f"s_add_u32 s{SWS}, s{SWS}, {P['wsoff']}\ns_addc_u32 s{SWS+1}, s{SWS+1}, 0")
ce = struct.unpack("<I", struct.pack("<f", (128 ** -0.5) * math.log2(math.e)))[0]
E(f"s_mov_b32 s{sCE}, {ce:#x}")
E(f"s_lshl_b32 s{sSC}, s{sGRP}, 11")
E(f"s_lshl_b32 s{sOP}, s{sGRP}, 14\ns_add_u32 s{sOP}, s{sOP}, {OOFF}")
E(f"s_lshl_b32 s{sA}, s{sW}, 12\ns_add_u32 s{sO}, s{sOP}, s{sA}\ns_add_u32 s{sO}, s{sO}, s{sF0}")
E(f"s_lshl_b32 s{sA}, s{sC}, 11\ns_add_u32 s{sOP}, s{sOP}, s{sA}")
E(f"s_lshl_b32 s{sOUT}, s{sGRP}, 10\ns_lshl_b32 s{sA}, s{sC}, 7\ns_add_u32 s{sOUT}, s{sOUT}, s{sA}")
E(f"s_lshl_b32 s{sA}, s{sW}, 14")
E(f"v_lshrrev_b32 v{TMP}, 2, v{vJ}\nv_lshl_add_u32 v{TMP}, v{vG}, 3, v{TMP}\nv_and_b32 v{TMP+1}, 1, v{vJ}\nv_lshlrev_b32 v{TMP+1}, 4, v{TMP+1}")
E(f"v_bfe_u32 v{TMP+2}, v{vJ}, 1, 1\nv_lshl_add_u32 v{TMP+1}, v{TMP+2}, {(G1//2048).bit_length()-1}, v{TMP+1}")
for hh in range(2):
    if hh: E(f"v_add_u32 v{TMP}, 4, v{TMP}")
    E(f"v_and_b32 v{TMP+2}, 15, v{TMP}\nv_xor_b32 v{TMP+2}, v{TMP+2}, v{TMP+1}\nv_lshlrev_b32 v{TMP+2}, 4, v{TMP+2}\nv_lshl_add_u32 v{TMP+2}, v{TMP}, 9, v{TMP+2}")
    E(f"v_add_u32 v{vFA+hh}, s{sA}, v{TMP+2}")
E(f"v_and_b32 v{TMP}, 1, v{vJ}")
if P["lead"]:
    E(f"v_lshlrev_b32 v{TMP+1}, 8, v{TMP}\nv_lshl_add_u32 v{vSC}, v{vG}, 5, v{TMP+1}")
else:
    E(f"s_mov_b32 s{sA}, {HB}\nv_mul_lo_u32 v{TMP+1}, s{sA}, v{TMP}\nv_lshrrev_b32 v{TMP+2}, 1, v{vJ}\nv_lshl_add_u32 v{TMP+1}, v{TMP+2}, 8, v{TMP+1}\nv_lshl_add_u32 v{vSC}, v{vG}, 5, v{TMP+1}")
E(f"s_lshl_b32 s{sTOT}, s{sGRP}, 10\ns_add_u32 s{sTOT}, s{sTOT}, {TOFF}")
E(f"s_mov_b32 s{sSELA}, 0x0c0c0400\ns_mov_b32 s{sSELB}, 0x04000c0c\ns_mov_b32 s{sMASK}, 0xff")
E(f"s_lshl_b32 s{sA}, s{sW}, 10\ns_add_u32 s{sA}, s{sA}, {L_WA}\nv_lshlrev_b32 v{TMP}, 6, v{TMP}\nv_lshl_add_u32 v{TMP}, v{vG}, 4, v{TMP}\nv_add_u32 v{vWW}, s{sA}, v{TMP}")
E(f"v_lshlrev_b32 v{TMP}, 6, v{vL}\nv_add_u32 v{vSCR}, {L_SC}, v{TMP}\nv_lshlrev_b32 v{vL4}, 2, v{vL}")
E(f"v_lshlrev_b32 v{TMP}, 4, v{vL}\nv_add_u32 v{vPB}, {L_PB}, v{TMP}")
E(f"s_lshl_b32 s{sA}, s{sW}, 11\ns_add_u32 s{sA}, s{sA}, {L_OL}\nv_lshlrev_b32 v{TMP}, 3, v{vL}\nv_add_u32 v{vOR}, s{sA}, v{TMP}")
E(f"v_lshrrev_b32 v{TMP}, 5, v{vL}\nv_lshlrev_b32 v{TMP}, 11, v{TMP}\nv_and_b32 v{TMP+1}, 31, v{vL}\nv_lshl_add_u32 v{vOS}, v{TMP+1}, 3, v{TMP}")
E(f"v_lshlrev_b32 v{vJ16}, 4, v{vJ}\nv_lshl_add_u32 v{vOP}, v{vG}, 8, v{vJ16}\nv_lshlrev_b32 v{vOUT}, 3, v{vJ}")
def nonce_load():
    E(f"s_lshl_b32 s{sB}, s{sGRP}, 14\ns_add_u32 s{sB}, s{sB}, {OOFF}")
    h.issue(f"buffer_load_dwordx4 {vr(PL)}, off, {srd(SWS)}, s{sB} sc1 nt", "old")
def nonce_make():
    h.wait("old")
    E(f"v_perm_b32 v{TMP}, v{PL+1}, v{PL}, s{sSELA}\nv_perm_b32 v{TMP+1}, v{PL+3}, v{PL+2}, s{sSELB}\nv_or_b32 v{TMP}, v{TMP}, v{TMP+1}")
    E(f"v_readfirstlane_b32 s{sA}, v{TMP}")
    E(f"s_mul_i32 s{sNON}, s{sA}, 0x9e3779b1\ns_add_u32 s{sNON}, s{sNON}, 0x7f4a7c15\ns_lshr_b32 s{sB}, s{sNON}, 15\ns_xor_b32 s{sNON}, s{sNON}, s{sB}")
    E(f"s_xor_b32 s{sB}, s{sNON}, 2\ns_cmp_eq_u32 s{sNON}, s{sA}\ns_cselect_b32 s{sNON}, s{sB}, s{sNON}")
    E(f"v_mov_b32 v{vRDY}, s{sNON}")
    E(f"v_and_b32 v{TMP}, 3, v{vL}\nv_lshlrev_b32 v{TMP}, 3, v{TMP}\nv_lshrrev_b32 v{vTG1}, v{TMP}, v{vRDY}")
    E(f"v_and_b32 v{TMP}, 1, v{vL}\nv_lshlrev_b32 v{TMP}, 4, v{TMP}\nv_lshrrev_b32 v{vTGA}, v{TMP}, v{vRDY}\nv_lshrrev_b32 v{vTGB}, 8, v{vTGA}")
def tag_check(r, n):
    for m in range(n):
        E(f"v_perm_b32 v{TMP+2*m}, v{r+4*m+1}, v{r+4*m}, s{sSELA}\nv_perm_b32 v{TMP+2*m+1}, v{r+4*m+3}, v{r+4*m+2}, s{sSELB}")
    for m in range(n): E(f"v_or_b32 v{TMP+2*m}, v{TMP+2*m}, v{TMP+2*m+1}")
    for m in range(n): E(f"v_xor_b32 v{TMP+2*m}, s{sNON}, v{TMP+2*m}")
    for m in range(1, n): E(f"v_or_b32 v{TMP}, v{TMP}, v{TMP+2*m}")
    E(f"v_cmp_ne_u32 vcc, 0, v{TMP}")
def untag(r, n):
    for m in range(n): E(f"v_and_b32 v{r+m}, 0xffffff00, v{r+m}")
def gather8(name, soff, pl, sleep):
    E(f"s_mov_b32 s{sSPIN}, {P['spin']}\nL_poll{name}:")
    E(f"buffer_load_dwordx4 {vr(PL)}, v{vOP}, {srd(SWS)}, s{soff} offen {pl}")
    E(f"buffer_load_dwordx4 {vr(PL+4)}, v{vOP}, {srd(SWS)}, s{soff} offen offset:1024 {pl}")
    E("s_waitcnt vmcnt(0)")
    tag_check(PL, 2)
    if sleep:
        E(f"s_cbranch_vccz L_got{name}\ns_sleep {sleep}\ns_sub_u32 s{sSPIN}, s{sSPIN}, 1\ns_cbranch_scc0 L_poll{name}\nL_got{name}:")
    else:
        E(f"s_sub_u32 s{sSPIN}, s{sSPIN}, 1\ns_cbranch_scc1 L_got{name}\ns_cbranch_vccnz L_poll{name}\nL_got{name}:")
    untag(PL, 8)
    for m in range(4): E(f"v_add_f32 v{PL+m}, v{PL+m}, v{PL+4+m}")
    for sw in ("v_permlane32_swap_b32", "v_permlane16_swap_b32"):
        for m in range(4): E(f"v_mov_b32 v{PL+4+m}, v{PL+m}")
        for m in range(4): E(f"{sw} v{PL+4+m}, v{PL+m}")
        for m in range(4): E(f"v_add_f32 v{PL+m}, v{PL+4+m}, v{PL+m}")
def publish(us):
    E(f"s_cmp_eq_u32 s{sW}, {us[-1]}\ns_cbranch_scc0 L_pub{us[-1]}")
    for n, u in enumerate(us):
        for m in range(4): E(f"ds_read_b128 {vr(S+m*4)}, v{vSCR} offset:{u*4096 + m*16}")
        E("s_waitcnt lgkmcnt(0)")
        for st in (8, 4, 2):
            for m in range(st): E(f"v_add_f32 v{S+m}, v{S+m}, v{S+m+st}")
        E(f"v_add_f32 v{WT+n}, v{S}, v{S+1}\nv_bfi_b32 v{WT+n}, s{sMASK}, v{vTG1}, v{WT+n}")
    for n, u in enumerate(us):
        E(f"s_add_u32 s{sA}, s{sSC}, {(u & 1) * HB + (u >> 1) * 65536}\ns_add_u32 s{sA}, s{sA}, s{sF0}")
        if "s" not in P["nosync"]: E(f"buffer_store_dword v{WT+n}, v{vL4}, {srd(SWS)}, s{sA} offen {STPOL}")
    E(f"L_pub{us[-1]}:")
def leader(ev):
    if "l" in P["nosync"] or not P["lead"]: return
    E(f"s_and_b32 s{sA}, s{sC}, 5\ns_lshl_b32 s{sB}, s{sW}, 3\ns_or_b32 s{sA}, s{sA}, s{sB}\ns_cmp_eq_u32 s{sA}, {4*ev}\ns_cbranch_scc0 L_ld{ev}")
    E(f"s_bfe_u32 s{sT}, s{sC}, 0x10001\ns_mul_i32 s{sT}, s{sT}, {HB}\ns_add_u32 s{sT}, s{sT}, s{sSC}\ns_add_u32 s{sT}, s{sT}, {ev*65536}")
    gather8(f"L{ev}", sT, LDPOL, 8)
    for m in range(4):
        E(f"s_lshr_b32 s{sA}, s{sNON}, {8*m}\nv_mov_b32 v{TMP+m}, s{sA}\nv_bfi_b32 v{PL+m}, s{sMASK}, v{TMP+m}, v{PL+m}")
    E(f"s_lshl_b32 s{sT}, s{sC}, 7\ns_add_u32 s{sT}, s{sT}, s{sTOT}\ns_mov_b64 exec, 0xffff")
    E(f"buffer_store_dwordx4 {vr(PL)}, v{vJ16}, {srd(SWS)}, s{sT} offen {pol('tpol')}\ns_mov_b64 exec, -1\nL_ld{ev}:")
def f_block(ks):
    E(f"s_mul_i32 s{sB}, s{sW}, {BB_*512}\ns_mul_i32 s{sT}, s{sC}, {CB*512}\ns_add_u32 s{sB}, s{sB}, s{sT}\ns_lshl_b32 s{sT}, s{sW}, 14")
    for t in range(16):
        if P["noF"]: continue
        h.window(P["FW"])
        E(f"s_add_u32 m0, s{sT}, {t*1024}\ns_add_u32 s{sA}, s{sB}, {ks*524288 + t*32768}")
        h.issue(f"buffer_load_dwordx4 v{vD+(t&7)}, {srd(SF)}, s{sA} offen {EFPOL} lds")
    h.drain()
    for bb in range(2):
        for w_ in range(4):
            x = ((w_ & 1) + 2 * bb + (w_ >> 1) * (W1 // 2048)) * 16
            for hh in range(2): E(f"v_xor_b32 v{TMP+hh}, {x}, v{vFA+hh}")
            for hb in range(2):
                for hh in range(2):
                    E(f"ds_read_b64_tr_b16 {ar(aFT + (((bb*4+w_)*2+hb)*2+ks)*4 + hh*2, 2)}, v{TMP+hh} offset:{hb*8}")
            if w_ & 1: E("s_waitcnt lgkmcnt(0)")
def xg(op, r):
    for sw in ("v_permlane32_swap_b32", "v_permlane16_swap_b32"):
        E(f"v_mov_b32 v{TMP+1}, v{r}\n{sw} v{TMP+1}, v{r}\n{op} v{r}, v{TMP+1}, v{r}")
def softmax(ev):
    E(f"s_cmp_eq_u32 s{sW}, 0\ns_cbranch_scc0 L_sm{ev}")
    if "l" not in P["nosync"]:
        if P["lead"]: E(f"s_add_u32 s{sA}, s{sTOT}, {ev*512}")
        else: E(f"s_add_u32 s{sA}, s{sSC}, {ev*65536}")
        E(f"s_mov_b32 s{sSPIN}, {P['spin']}\nL_sc{ev}:")
        for m, o in enumerate((0, 16, 128, 144)): E(f"buffer_load_dwordx4 {vr(S+m*4)}, v{vSC}, {srd(SWS)}, s{sA} offen offset:{o} {LDPOL}")
        E("s_waitcnt vmcnt(0)")
        tag_check(S, 4)
        E(f"s_cbranch_vccz L_sc_ok{ev}\ns_sleep 8\ns_sub_u32 s{sSPIN}, s{sSPIN}, 1\ns_cbranch_scc0 L_sc{ev}\nL_sc_ok{ev}:")
    untag(S, 16)
    if not P["lead"]:
        for ctl in ("quad_perm:[2,3,0,1]", "row_ror:4", "row_ror:8"):
            for m in range(16): E(f"v_add_f32_dpp v{S+m}, v{S+m}, v{S+m} {ctl} row_mask:0xf bank_mask:0xf")
    maxtree("v_max3_f32", TMP + 2, range(S, S + 16)); xg("v_max_f32", TMP + 2)
    E(f"v_mul_f32 v{TMP+2}, s{sCE}, v{TMP+2}")
    for m in range(16): E(f"v_fma_f32 v{S+m}, v{S+m}, s{sCE}, -v{TMP+2}")
    for m in range(16): E(f"v_exp_f32 v{S+m}, v{S+m}")
    for m in range(4): E(f"v_add_f32 v{TMP+4+m}, v{S+m}, v{S+m+4}")
    for m in range(4): E(f"v_add_f32 v{TMP+8+m}, v{S+m+8}, v{S+m+12}")
    for m in range(4): E(f"v_add_f32 v{TMP+4+m}, v{TMP+4+m}, v{TMP+8+m}")
    E(f"v_add_f32 v{TMP+4}, v{TMP+4}, v{TMP+5}\nv_add_f32 v{TMP+6}, v{TMP+6}, v{TMP+7}\nv_add_f32 v{TMP+3}, v{TMP+4}, v{TMP+6}")
    xg("v_add_f32", TMP + 3)
    E(f"v_rcp_f32 v{TMP+3}, v{TMP+3}")
    for m in range(16): E(f"v_mul_f32 v{S+m}, v{S+m}, v{TMP+3}")
    for m in range(8): E(f"v_cvt_pk_bf16_f32 v{PB+m}, v{S+2*m}, v{S+2*m+1}")
    E(f"ds_write_b128 v{vPB}, {vr(PB)}\nds_write_b128 v{vPB}, {vr(PB+4)} offset:1024\ns_waitcnt lgkmcnt(0)\nL_sm{ev}:")
def weights(ev):
    E(f"ds_read_b128 {vr(PB)}, v{vPB}\nds_read_b128 {vr(PB+4)}, v{vPB} offset:1024")
    E("s_mov_b32 s100, 0x00030003\ns_mov_b32 s101, 0x00030003\ns_waitcnt lgkmcnt(0)")
    for bb in range(2):
        for w_ in range(4):
            for ks in range(2):
                for hb in range(2):
                    c_ = "0" if ks == 0 else vr(DD + hb * 4)
                    E(f"v_mfma_f32_16x16x32_bf16 {vr(DD+hb*4)}, {ar(aFT + (((bb*4+w_)*2+hb)*2+ks)*4)}, {vr(PB+ks*4)}, {c_}")
            for kk in range(4): E(f"v_cvt_pk_bf16_f32 v{WT+kk}, v{DD+2*kk}, v{DD+2*kk+1}")
            E(f"s_mov_b64 exec, s[100:101]\nds_write_b128 v{vWW}, {vr(WT)} offset:{ev*4096 + bb*512 + w_*128}\ns_mov_b64 exec, -1")
    E("s_waitcnt lgkmcnt(0)")
def prefetch():
    E(f"s_lshl_b32 s{sA}, s2, 12\ns_lshl_b32 s{sB}, s{sW}, 10\ns_add_u32 s{sA}, s{sA}, s{sB}\nv_lshlrev_b32 v{TMP}, 4, v{vL}")
    if "E" in P["pf"]: h.issue(f"buffer_load_dwordx4 {vr(PL)}, v{TMP}, {srd(SE)}, s{sA} offen {pol('pfpol')}")
    if "F" in P["pf"]: h.issue(f"buffer_load_dwordx4 {vr(PL+4)}, v{TMP}, {srd(SF)}, s{sA} offen {pol('pfpol')}")
if P["pf"] and P["pfat"] < 0: prefetch()
for k in BARS:
    if k in SBAR:
        E("s_barrier"); e_dma(0)
        if P["early1"]: e_dma(1)
    elif k in EBAR:
        B = EBAR.index(k)
        h.wait(("D", B))
        E("s_barrier")
        if P["late"] and P["early1"]:
            if 0 < B < 3: e_dma(B + 1)
        elif B < 3: e_dma(B + 1)
        if B == 2: nonce_load()
        if B == 3 and P["pfF"] != "-": l2_touch(SF, P["pfF"], PL + 12)
        if B == 3: nonce_make()
    elif k in UBAR:
        u = UBAR.index(k)
        E("s_barrier")
        if not P["merge"]: publish([u])
        elif u & 1: publish([u - 1, u])
        for bb in range(2):
            if int(P["FB"][bb]) == u + 1:
                f_block(bb)
                if P["hst"]: E(f"s_memrealtime s[{70+2*bb}:{71+2*bb}]\ns_waitcnt lgkmcnt(0)")
        if u == 1: leader(0)
        if u == 2: softmax(0)
    elif k in LBAR:
        E("s_barrier"); leader(1)
    elif k in PBAR:
        E("s_barrier"); weights(PBAR.index(k))
    elif k == 320:
        E("s_barrier"); softmax(1)
    else:
        E("s_barrier")
E("s_barrier")
for w_ in range(4): E(f"ds_read_b64 {vr(S+w_*2, 2)}, v{vOR} offset:{w_*512}")
E("s_waitcnt lgkmcnt(0)")
E(f"v_add_f32 v{S}, v{S}, v{S+2}\nv_add_f32 v{S+1}, v{S+1}, v{S+3}\nv_add_f32 v{S+4}, v{S+4}, v{S+6}\nv_add_f32 v{S+5}, v{S+5}, v{S+7}")
E(f"v_add_f32 v{S}, v{S}, v{S+4}\nv_add_f32 v{S+1}, v{S+1}, v{S+5}\nv_bfi_b32 v{S}, s{sMASK}, v{vTGA}, v{S}\nv_bfi_b32 v{S+1}, s{sMASK}, v{vTGB}, v{S+1}")
E(f"buffer_store_dwordx2 {vr(S, 2)}, v{vOS}, {srd(SWS)}, s{sO} offen {pol('opol')}")
E(f"s_cmp_eq_u32 s{sW}, 0\ns_cbranch_scc0 L_done")
if P["stamps"]: E("s_memrealtime s[86:87]")
gather8("O", sOP, "sc1", P["psleep"])
E(f"v_cvt_pk_bf16_f32 v{PL+4}, v{PL}, v{PL+1}\nv_cvt_pk_bf16_f32 v{PL+5}, v{PL+2}, v{PL+3}")
E("s_mov_b64 exec, 0xffff")
E(f"buffer_store_dwordx2 {vr(PL+4, 2)}, v{vOUT}, {srd(SO)}, s{sOUT} offen {pol('outpol')}")
if P["stamps"]:
    E("s_waitcnt vmcnt(0)\ns_memrealtime s[92:93]\ns_getreg_b32 s88, hwreg(HW_REG_XCC_ID)")
    E(f"v_mov_b32 v{TMP}, 0\nds_read_b128 v[104:107], v{TMP}\nds_read_b128 v[108:111], v{TMP} offset:16\ns_waitcnt lgkmcnt(0)")
    E("s_sub_u32 s86, s86, s90")
    for m in range(8): E(f"v_subrev_u32 v{104+m}, s90, v{104+m}")
    for m, sr in enumerate((90, 91, 92, 93, 88, 84, 86, sSPIN)): E(f"v_mov_b32 v{96+m}, s{sr}")
    E("v_mov_b32 v101, v111")
    if P["hst"]: E("s_sub_u32 s70, s70, s90\ns_sub_u32 s72, s72, s90\nv_mov_b32 v109, s70\nv_mov_b32 v110, s72")
    build_srd(SWS, 18, 1 << 30)
    E(f"s_lshl_b32 s{sA}, s2, 6\ns_add_u32 s{sA}, s{sA}, 0x20000000\ns_mov_b64 exec, 1")
    for m in range(4): E(f"buffer_store_dwordx4 {vr(96+m*4)}, off, {srd(SWS)}, s{sA} offset:{m*16}")
E("L_done:\ns_endpgm")
E.raw('.section .rodata,"a"\n.p2align 6')
E.raw(f""".amdhsa_kernel {NAME}
  .amdhsa_next_free_vgpr 256
  .amdhsa_next_free_sgpr 102
  .amdhsa_accum_offset 128
  .amdhsa_group_segment_fixed_size 0
  .amdhsa_float_denorm_mode_32 3
  .amdhsa_kernarg_size 64
  .amdhsa_user_sgpr_count 2
  .amdhsa_user_sgpr_kernarg_segment_ptr 1
  .amdhsa_system_sgpr_workgroup_id_x 1
.end_amdhsa_kernel""")
open(out, "w").write(E.text())
print(out, "instructions", E.count, "auto nops", E.nops, file=sys.stderr)
```

```python
import sys, struct, math
from emit import Emitter

P = dict(X=5, XE=5, NE=0, XP="", X0=0, N0=0, first=5, pol="nt", efpol="nt", qpol="nt", stamps=0, bar=0, spin=1 << 20,
         LEAD=2, FW=3, prio=1, noE=0, noF=0, nosync="", stpol="sc1", ldpol="sc1", tpol="sc1", lead=0, merge=1,
         HB=0x100000, wsoff=0, PB0=224, LB=288, crot=0, hst=0, FB="12", pf="", pfpol="", pfat=-1, psleep=0, X1="", N1=0, opol="sc1", pk=0, ph=0, D1=4, D0=4, late=1, early1=1, pfE="-", pfF="-", fine="", qlate=1, SB=-1, eflat=0, ereg=0, XE1=6, NE1=0, outpol="", dbgst=0)
out = sys.argv[1]
for a in sys.argv[2:]:
    k, v = a.split("="); P[k] = type(P[k])(v) if not isinstance(P[k], int) else int(v, 0)
def pol(k): return P[k].replace("+", " ")
POL, EFPOL, STPOL, LDPOL = pol("pol"), pol("efpol"), pol("stpol"), pol("ldpol")
NAME = "standalone__low_rank_proj_linformer__decode_kernel"
E = Emitter()

def srd(n): return f"s[{n}:{n+3}]"
def vr(n, k=4): return f"v[{n}:{n+k-1}]"
def ar(n, k=4): return f"a[{n}:{n+k-1}]"
SK, SV, SE, SF, SQ, SO, SD, SWS = 20, 24, 28, 32, 36, 40, 44, 48
sW, sGRP, sC, sKV, sT, sA, sB, sSELL, sSELH, sCE, sE0, sM, sSC, sO, sOP, sOUT, sDBG, sSPIN, sF0 = 3, *range(52, 70)
sNON, sSELA, sSELB, sMASK, sTOT = 94, 95, 96, 97, 98
HB = P["HB"]
OOFF = 0x40000; TOFF = 0xC0000; EPOFF = 0xD0000
L_SC = 65536; L_OL = L_SC + 16384; L_WA = L_OL + 8192; L_PB = L_WA + 8192; LDS_BYTES = L_PB + 2048

class Q:
    def __init__(s): s.n = 0; s.done = 0; s.tag = {}
    def issue(s, text, tag=None):
        E(text); s.n += 1
        if tag is not None: s.tag[tag] = s.n
    def wait(s, tag):
        idx = s.tag[tag]
        if idx <= s.done: return
        assert s.n - idx <= 63
        E(f"s_waitcnt vmcnt({s.n - idx})"); s.done = idx
    def window(s, w):
        if s.n - s.done >= w: E(f"s_waitcnt vmcnt({w-1})"); s.done = s.n - (w - 1)
    def drain(s): E("s_waitcnt vmcnt(0)"); s.done = s.n
def build_srd(n, lo, size):
    E(f"s_mov_b32 s{n}, s{lo}\ns_mov_b32 s{n+1}, s{lo+1}\ns_mov_b32 s{n+2}, {size}\ns_mov_b32 s{n+3}, 0x00020000")
def maxtree(op, dst, regsl):
    r = list(regsl)
    E(f"{op} v{dst}, v{r[0]}, v{r[1]}, v{r[2]}"); r = r[3:]
    while len(r) >= 2: E(f"{op} v{dst}, v{dst}, v{r[0]}, v{r[1]}"); r = r[2:]
    if r: E(f"{op} v{dst}, v{dst}, v{r[0]}, v{r[0]}")

EBAR = [12, 28, 44, 60] if P["late"] else [4, 16, 32, 48]
G1, W1 = (8192, 16384) if P["pk"] else (16384, 8192)
CB, BB_ = (1, 8) if P["ph"] else (4, 1)
UBAR = [8 * (8 * u + 8) + 2 for u in range(4)]
LBAR = [P["LB"]] if P["lead"] else []
PBAR = [P["PB0"], P["PB0"] + 128]
XBAR = [320, 384]
SBAR = [P["SB"]] if P["SB"] >= 0 else []
fixed = SBAR + EBAR + UBAR + LBAR + PBAR + XBAR
extra = [8 * T for T in range(25, 64) if P["bar"] and T % P["bar"] == 0 and 8 * T not in fixed]
BARS = sorted(fixed + extra)

E.raw(f"; @launch grid=(256,1,1) block=(512,1,1) lds={LDS_BYTES}")
E.raw('.amdgcn_target "amdgcn-amd-amdhsa--gfx950"\n.text')
E.raw(f".globl {NAME}\n.p2align 8\n.type {NAME},@function\n{NAME}:")
E("s_load_dwordx16 s[4:19], s[0:1], 0")
if P["stamps"]: E("s_memrealtime s[90:91]")
E("s_cmp_ge_u32 s2, 256\ns_cbranch_scc1 L_done")
vL, vJ, vG = 0, 126, 127
E(f"v_lshrrev_b32 v1, 6, v0\nv_and_b32 v{vL}, 63, v0")
E(f"v_readfirstlane_b32 s{sW}, v1")
E(f"v_and_b32 v{vJ}, 15, v{vL}\nv_lshrrev_b32 v{vG}, 4, v{vL}")
E(f"s_lshr_b32 s{sGRP}, s2, 3\ns_and_b32 s{sC}, s2, 7")
E(f"s_cmp_ge_u32 s{sW}, 4\ns_cbranch_scc0 L_stream")

vD, vFA, vSC, vSCR, vL4, vOR, vOS, vOP, vOUT, vRDY, vWW, vTG1, vTGA, vTGB, vJ16, vPB = 4, 12, *range(16, 30)
S, PB, DD, WT, TMP, PL = 32, 48, 56, 64, 68, 80
aFT = 0
h = Q()
E(f"s_sub_u32 s{sW}, s{sW}, 4")
E(f"v_lshrrev_b32 v{TMP+1}, 5, v{vL}\nv_and_b32 v{TMP}, 31, v{vL}\nv_xor_b32 v{TMP}, v{TMP}, v{TMP+1}\nv_lshlrev_b32 v{TMP}, 4, v{TMP}\nv_lshl_add_u32 v{vD}, v{TMP+1}, 14, v{TMP}")
if P["eflat"]: E(f"v_lshlrev_b32 v{vD}, 4, v{vL}")
for t in range(1, 8): E(f"v_xor_b32 v{vD+t}, {t*32}, v{vD}")
E(f"s_lshl_b32 s{sF0}, s{sC}, 8\ns_mul_i32 s{sB}, s{sC}, {CB*512}\ns_lshl_b32 s{sA}, s{sW}, 18\ns_add_u32 s{sE0}, s{sB}, s{sA}\ns_lshl_b32 s{sM}, s{sW}, 13")
E(f"s_mov_b32 s{SE+2}, {1<<20}\ns_mov_b32 s{SE+3}, 0x00020000")
E("s_waitcnt lgkmcnt(0)")
E(f"s_mov_b32 s{SE}, s10\ns_mov_b32 s{SE+1}, s11")
def e_dma(B):
    for t in range(8):
        if P["noE"]: h.tag[("D", B)] = 0; continue
        if P["D1" if B else "D0"]: h.window(P["D1" if B else "D0"])
        E(f"s_add_u32 m0, s{sM}, {(B & 1) * 32768 + t * 1024}")
        E(f"s_add_u32 s{sA}, s{sE0}, {t * 32768 + B * BB_ * 512}")
        if P["eflat"]: E(f"s_mov_b32 s{sA}, {(P['eflat']-1) * (B*8+t) * 1024}")
        if P["ereg"]: h.issue(f"buffer_load_dwordx4 {vr(88+t*4)}, v{vD+t}, {srd(SE)}, s{sA} offen {EFPOL}", ("D", B))
        else: h.issue(f"buffer_load_dwordx4 v{vD+t}, {srd(SE)}, s{sA} offen {EFPOL} lds", ("D", B))
def l2_touch(sr, pl, reg):
    assert not P["ph"]
    E(f"s_lshl_b32 s{sA}, s{sGRP}, 15\ns_lshr_b32 s{sB}, s{sW}, 1\ns_lshl_b32 s{sB}, s{sB}, 14\ns_add_u32 s{sA}, s{sA}, s{sB}")
    E(f"s_and_b32 s{sB}, s{sW}, 1\ns_lshl_b32 s{sB}, s{sB}, 10\ns_add_u32 s{sA}, s{sA}, s{sB}\ns_lshl_b32 s{sB}, s{sC}, 11\ns_add_u32 s{sA}, s{sA}, s{sB}")
    E(f"v_lshlrev_b32 v{TMP}, 4, v{vL}")
    h.issue(f"buffer_load_dwordx4 {vr(reg)}, v{TMP}, {srd(sr)}, s{sA} offen {pl.replace('+', ' ')}")
if P["pfE"] != "-": l2_touch(SE, P["pfE"], PL + 8)
if not SBAR: e_dma(0)
E("s_branch L_helper")

E("L_stream:")
vKV, vEA, vSCW, vOW, vWA, vQ = 1, 2, 3, 4, 5, 6
TB2 = 64
vEB = 60
RING, NSLOT = 8, 12
VBA, VBB, WA = 56, 88, 120
TB, TT, ACK = 56, 88, 96
def QR(u): return 112 + 4 * u
aE, aV = 0, 0
q = Q()
def win(k):
    T = k >> 3
    if T >= 64 - P["NE"]: return P["XE"]
    if T >= 64 - P["NE1"]: return P["XE1"]
    if T < P["N0"]: return P["X0"]
    if T < P["N1"]:
        xp = [int(c, 16) for c in P["X1"]]
        return xp[k % len(xp)]
    if P["XP"]:
        xp = [int(c, 16) for c in P["XP"]]
        return xp[k % len(xp)]
    return P["X"]
next_load = [0]
def issue_load():
    n = next_load[0]; next_load[0] += 1
    T, i = n >> 3, n & 7
    if i == 0:
        off = ((T >> 3) & 3) * 2097152 + (T & 1) * 4096 + ((T & 7) >> 1) * BB_ * 65536
        E(f"s_add_u32 s{sT}, s{sKV}, {off}" if off else f"s_mov_b32 s{sT}, s{sKV}")
    r = RING + (n % NSLOT) * 4
    q.issue(f"buffer_load_dwordx4 {vr(r)}, v{vKV}, {srd(SK if T < 32 else SV)}, s{sT} offen offset:{i*256} {POL}", ("ld", n))
E(f"v_lshlrev_b32 v{vQ}, 4, v{vJ}\nv_and_b32 v7, 1, v{vG}\nv_lshl_add_u32 v{vKV}, v7, 15, v{vQ}\nv_lshrrev_b32 v2, 1, v{vG}\nv_lshl_add_u32 v{vKV}, v2, {G1.bit_length()-1}, v{vKV}")
E(f"s_lshl_b32 s{sKV}, s{sGRP}, 23\ns_mul_i32 s{sA}, s{sC}, {CB*65536}\ns_add_u32 s{sKV}, s{sKV}, s{sA}")
E(f"s_and_b32 s{sE0}, s{sW}, 1\ns_lshl_b32 s{sA}, s{sE0}, 11\ns_add_u32 s{sKV}, s{sKV}, s{sA}\ns_lshr_b32 s{sM}, s{sW}, 1\ns_lshl_b32 s{sA}, s{sM}, {W1.bit_length()-1}\ns_add_u32 s{sKV}, s{sKV}, s{sA}")
E(f"s_lshl_b32 s{sB}, s{sGRP}, 10")
E(f"s_mov_b32 s{SK+2}, {1<<28}\ns_mov_b32 s{SK+3}, 0x00020000\ns_mov_b32 s{SQ+2}, 32768\ns_mov_b32 s{SQ+3}, 0x00020000")
E("s_waitcnt lgkmcnt(0)")
E(f"s_mov_b32 s{SK}, s6\ns_mov_b32 s{SK+1}, s7\ns_mov_b32 s{SQ}, s4\ns_mov_b32 s{SQ+1}, s5")
for n in range(P["first"]): issue_load()
if P["prio"]: E(f"s_setprio {P['prio']}")
E(f"s_mul_i32 s{sA}, s{sM}, {W1//2048}\ns_add_u32 s{sA}, s{sA}, s{sE0}\nv_lshlrev_b32 v7, 4, v7\nv_lshl_add_u32 v7, v2, {(G1//2048).bit_length()-1}, v7\nv_add_u32 v7, s{sA}, v7")
E(f"v_xor_b32 v7, v7, v{vJ}\nv_lshlrev_b32 v7, 4, v7\nv_lshl_add_u32 v{vEA}, v{vJ}, 9, v7\nv_xor_b32 v{vEB}, 32, v{vEA}")
E(f"s_lshl_b32 s{sA}, s{sW}, 4\ns_add_u32 s{sA}, s{sA}, {L_SC}\nv_lshlrev_b32 v7, 6, v{vJ}\nv_lshl_add_u32 v7, v{vG}, 2, v7\nv_add_u32 v{vSCW}, s{sA}, v7")
E(f"s_lshl_b32 s{sA}, s{sW}, 9\ns_add_u32 s{sA}, s{sA}, {L_OL}\nv_lshlrev_b32 v7, 5, v{vJ}\nv_add_u32 v{vOW}, s{sA}, v7")
E(f"s_lshl_b32 s{sA}, s{sW}, 7\ns_add_u32 s{sA}, s{sA}, {L_WA}\nv_and_b32 v7, 1, v{vJ}\nv_lshlrev_b32 v7, 6, v7\nv_lshl_add_u32 v7, v{vG}, 4, v7\nv_add_u32 v{vWA}, s{sA}, v7")
for u in range(4): q.issue(f"buffer_load_dwordx4 {vr(QR(u))}, v{vQ}, {srd(SQ)}, s{sB} offen offset:{u*256} {pol('qpol')}", ("q", u))
build_srd(SV, 8, 1 << 28)
E(f"s_mov_b32 s{sSELL}, 0x05040100\ns_mov_b32 s{sSELH}, 0x07060302")

def vbuf(T): return VBA if (T & 1) == 0 else VBB
def v_finish(T, es):
    for e in es:
        c_ = "0" if (T & 7) == 0 else ar(aV + e * 4)
        E(f"v_mfma_f32_16x16x32_bf16 {ar(aV+e*4)}, {vr(WA+(T&1)*4)}, {vr(vbuf(T)+e*4)}, {c_}")
def v_epi(u):
    E("s_mov_b64 exec, 0xffff")
    for e in range(8): E(f"ds_write_b32 v{vOW}, a{aV + e*4 + (u & 1)} offset:{u*2048 + e*4}")
    E("s_mov_b64 exec, -1")
for k in range(512):
    T, i = k >> 3, k & 7
    if i == 0: E(f"; ---- tile {T}")
    if P["stamps"] and not P["fine"] and i == 0 and T % 8 == 0 and T: E(f"s_memrealtime s[{70+2*(T//8-1)}:{71+2*(T//8-1)}]")
    q.wait(("ld", k))
    if P["fine"]:
        fs = [int(x) for x in P["fine"].split(",")]
        if k in fs: E(f"s_memrealtime s[{70+2*fs.index(k)}:{71+2*fs.index(k)}]")
    while next_load[0] < min(512, k + win(k) + 1): issue_load()
    if k in BARS:
        E("s_waitcnt lgkmcnt(0)\ns_barrier")
    elif k in ((16, 32, 48, 64, 510) if P["late"] else (8, 24, 40, 56, 510)) or (T > 32 and i == 0): E("s_waitcnt lgkmcnt(0)")
    r = RING + (k % NSLOT) * 4
    QL = P["first"] if P["qlate"] else 0
    assert not (k <= QL and next_load[0] > NSLOT), "ring slot reused before its row was consumed"
    assert next_load[0] - 1 - NSLOT < (k if T < 32 else k & ~1) or k <= QL
    if k == QL: q.wait(("q", 3))
    if i == 0 and 0 < T <= 32:
        held = P["late"] and T <= 8 and T & 1
        for kk in range(4): E(f"v_cvt_pk_bf16_f32 v{(TB2 if held else TB)+kk}, v{TT+2*kk}, v{TT+2*kk+1}")
    if T > 32 and i in (0, 2, 4, 6): v_finish(T - 1, (i, i + 1))
    if T < 32:
        for kk in ([] if k < QL else range(k + 1) if k == QL else [k]):
            for c4 in range(4):
                E(f"v_dot2_f32_bf16 v{TT+(kk&7)}, v{RING+(kk%NSLOT)*4+c4}, v{QR(T>>3)+c4}, {'0' if c4 == 0 else 'v%d' % (TT+(kk&7))}")
    if i == 0 and 0 < T <= 32:
        todo = [((T - 1) & 7, TB)]
        if P["late"] and T <= 8: todo = [] if T & 1 else [(T - 2, TB2), (T - 1, TB)]
        for b_, tb in todo:
            for blk in range(4):
                c_ = "0" if b_ == 0 else vr(ACK + blk * 4)
                E(f"v_mfma_f32_16x16x32_bf16 {vr(ACK+blk*4)}, {vr(tb)}, {ar(aE+(b_*4+blk)*4)}, {c_}")
    if T >= 32 and i & 1:
        rp = RING + ((k - 1) % NSLOT) * 4
        for c4 in range(4):
            E(f"v_perm_b32 v{vbuf(T)+(2*c4)*4+(i>>1)}, v{r+c4}, v{rp+c4}, s{sSELL}")
            E(f"v_perm_b32 v{vbuf(T)+(2*c4+1)*4+(i>>1)}, v{r+c4}, v{rp+c4}, s{sSELH}")
    for d in range(4):
        if k - d in EBAR:
            B = EBAR.index(k - d); b0 = d >> 1
            for blk in (2 * (d & 1), 2 * (d & 1) + 1):
                E(f"ds_read_b128 {ar(aE + ((2*B+b0)*4+blk)*4)}, v{vEB if b0 else vEA} offset:{(B & 1)*32768 + blk*8192}")
    if k + 1 in UBAR:
        u = UBAR.index(k + 1)
        for b in range(4): E(f"v_add_f32 v{ACK+b*4}, v{ACK+b*4}, v{ACK+b*4+1}")
        for b in range(4): E(f"v_add_f32 v{ACK+b*4+2}, v{ACK+b*4+2}, v{ACK+b*4+3}")
        for b in range(4): E(f"v_add_f32 v{ACK+b*4}, v{ACK+b*4}, v{ACK+b*4+2}")
        for b in range(4): E(f"ds_write_b32 v{vSCW}, v{ACK+b*4} offset:{u*4096 + b*1024}")
    if T >= 32 and i == 3:
        E(f"ds_read_b128 {vr(WA+(T&1)*4)}, v{vWA} offset:{((T-32)>>4)*4096 + (T&7)*512}")
    if T in (40, 48, 56) and i == 7: v_epi((T - 40) >> 3)
if P["stamps"]: E("s_memrealtime s[84:85]")
v_finish(63, range(8))
v_epi(3)
if P["stamps"]:
    E(f"s_cmp_eq_u32 s{sW}, 0\ns_cbranch_scc0 L_nost\ns_waitcnt lgkmcnt(0)")
    for m, sr in enumerate((70, 72, 74, 76, 78, 80, 82, 84)): E(f"v_mov_b32 v{8+m}, s{sr}")
    E("v_mov_b32 v7, 0\nds_write_b128 v7, v[8:11]\nds_write_b128 v7, v[12:15] offset:16\nL_nost:")
E("s_waitcnt lgkmcnt(0)\ns_barrier\ns_endpgm")

E("L_helper:")
if P["late"] and P["early1"] and not SBAR: e_dma(1)
build_srd(SF, 12, 1 << 20); build_srd(SO, 14, 32768); build_srd(SWS, 18, (1 << 30) - P["wsoff"])
if P["wsoff"]: E(f"s_add_u32 s{SWS}, s{SWS}, {P['wsoff']}\ns_addc_u32 s{SWS+1}, s{SWS+1}, 0")
ce = struct.unpack("<I", struct.pack("<f", (128 ** -0.5) * math.log2(math.e)))[0]
E(f"s_mov_b32 s{sCE}, {ce:#x}")
E(f"s_lshl_b32 s{sSC}, s{sGRP}, 11")
E(f"s_lshl_b32 s{sOP}, s{sGRP}, 14\ns_add_u32 s{sOP}, s{sOP}, {OOFF}")
E(f"s_lshl_b32 s{sA}, s{sW}, 12\ns_add_u32 s{sO}, s{sOP}, s{sA}\ns_add_u32 s{sO}, s{sO}, s{sF0}")
E(f"s_lshl_b32 s{sA}, s{sC}, 11\ns_add_u32 s{sOP}, s{sOP}, s{sA}")
E(f"s_lshl_b32 s{sOUT}, s{sGRP}, 10\ns_lshl_b32 s{sA}, s{sC}, 7\ns_add_u32 s{sOUT}, s{sOUT}, s{sA}")
E(f"s_lshl_b32 s{sA}, s{sW}, 14")
E(f"v_lshrrev_b32 v{TMP}, 2, v{vJ}\nv_lshl_add_u32 v{TMP}, v{vG}, 3, v{TMP}\nv_and_b32 v{TMP+1}, 1, v{vJ}\nv_lshlrev_b32 v{TMP+1}, 4, v{TMP+1}")
E(f"v_bfe_u32 v{TMP+2}, v{vJ}, 1, 1\nv_lshl_add_u32 v{TMP+1}, v{TMP+2}, {(G1//2048).bit_length()-1}, v{TMP+1}")
for hh in range(2):
    if hh: E(f"v_add_u32 v{TMP}, 4, v{TMP}")
    E(f"v_and_b32 v{TMP+2}, 15, v{TMP}\nv_xor_b32 v{TMP+2}, v{TMP+2}, v{TMP+1}\nv_lshlrev_b32 v{TMP+2}, 4, v{TMP+2}\nv_lshl_add_u32 v{TMP+2}, v{TMP}, 9, v{TMP+2}")
    E(f"v_add_u32 v{vFA+hh}, s{sA}, v{TMP+2}")
E(f"v_and_b32 v{TMP}, 1, v{vJ}")
if P["lead"]:
    E(f"v_lshlrev_b32 v{TMP+1}, 8, v{TMP}\nv_lshl_add_u32 v{vSC}, v{vG}, 5, v{TMP+1}")
else:
    E(f"s_mov_b32 s{sA}, {HB}\nv_mul_lo_u32 v{TMP+1}, s{sA}, v{TMP}\nv_lshrrev_b32 v{TMP+2}, 1, v{vJ}\nv_lshl_add_u32 v{TMP+1}, v{TMP+2}, 8, v{TMP+1}\nv_lshl_add_u32 v{vSC}, v{vG}, 5, v{TMP+1}")
E(f"s_lshl_b32 s{sTOT}, s{sGRP}, 10\ns_add_u32 s{sTOT}, s{sTOT}, {TOFF}")
E(f"s_mov_b32 s{sSELA}, 0x0c0c0400\ns_mov_b32 s{sSELB}, 0x04000c0c\ns_mov_b32 s{sMASK}, 0xff")
E(f"s_lshl_b32 s{sA}, s{sW}, 10\ns_add_u32 s{sA}, s{sA}, {L_WA}\nv_lshlrev_b32 v{TMP}, 6, v{TMP}\nv_lshl_add_u32 v{TMP}, v{vG}, 4, v{TMP}\nv_add_u32 v{vWW}, s{sA}, v{TMP}")
E(f"v_lshlrev_b32 v{TMP}, 6, v{vL}\nv_add_u32 v{vSCR}, {L_SC}, v{TMP}\nv_lshlrev_b32 v{vL4}, 2, v{vL}")
E(f"v_lshlrev_b32 v{TMP}, 4, v{vL}\nv_add_u32 v{vPB}, {L_PB}, v{TMP}")
E(f"s_lshl_b32 s{sA}, s{sW}, 11\ns_add_u32 s{sA}, s{sA}, {L_OL}\nv_lshlrev_b32 v{TMP}, 3, v{vL}\nv_add_u32 v{vOR}, s{sA}, v{TMP}")
E(f"v_lshrrev_b32 v{TMP}, 5, v{vL}\nv_lshlrev_b32 v{TMP}, 11, v{TMP}\nv_and_b32 v{TMP+1}, 31, v{vL}\nv_lshl_add_u32 v{vOS}, v{TMP+1}, 3, v{TMP}")
E(f"v_lshlrev_b32 v{vJ16}, 4, v{vJ}\nv_lshl_add_u32 v{vOP}, v{vG}, 8, v{vJ16}\nv_lshlrev_b32 v{vOUT}, 3, v{vJ}")
def nonce_load():
    E(f"s_lshl_b32 s{sB}, s{sGRP}, 14\ns_add_u32 s{sB}, s{sB}, {OOFF}")
    h.issue(f"buffer_load_dwordx4 {vr(PL)}, off, {srd(SWS)}, s{sB} sc1 nt", "old")
def nonce_make():
    h.wait("old")
    E(f"v_perm_b32 v{TMP}, v{PL+1}, v{PL}, s{sSELA}\nv_perm_b32 v{TMP+1}, v{PL+3}, v{PL+2}, s{sSELB}\nv_or_b32 v{TMP}, v{TMP}, v{TMP+1}")
    E(f"v_readfirstlane_b32 s{sA}, v{TMP}")
    E(f"s_mul_i32 s{sNON}, s{sA}, 0x9e3779b1\ns_add_u32 s{sNON}, s{sNON}, 0x7f4a7c15\ns_lshr_b32 s{sB}, s{sNON}, 15\ns_xor_b32 s{sNON}, s{sNON}, s{sB}")
    E(f"s_xor_b32 s{sB}, s{sNON}, 2\ns_cmp_eq_u32 s{sNON}, s{sA}\ns_cselect_b32 s{sNON}, s{sB}, s{sNON}")
    E(f"v_mov_b32 v{vRDY}, s{sNON}")
    E(f"v_and_b32 v{TMP}, 3, v{vL}\nv_lshlrev_b32 v{TMP}, 3, v{TMP}\nv_lshrrev_b32 v{vTG1}, v{TMP}, v{vRDY}")
    E(f"v_and_b32 v{TMP}, 1, v{vL}\nv_lshlrev_b32 v{TMP}, 4, v{TMP}\nv_lshrrev_b32 v{vTGA}, v{TMP}, v{vRDY}\nv_lshrrev_b32 v{vTGB}, 8, v{vTGA}")
def tag_check(r, n):
    for m in range(n):
        E(f"v_perm_b32 v{TMP+2*m}, v{r+4*m+1}, v{r+4*m}, s{sSELA}\nv_perm_b32 v{TMP+2*m+1}, v{r+4*m+3}, v{r+4*m+2}, s{sSELB}")
    for m in range(n): E(f"v_or_b32 v{TMP+2*m}, v{TMP+2*m}, v{TMP+2*m+1}")
    for m in range(n): E(f"v_xor_b32 v{TMP+2*m}, s{sNON}, v{TMP+2*m}")
    for m in range(1, n): E(f"v_or_b32 v{TMP}, v{TMP}, v{TMP+2*m}")
    E(f"v_cmp_ne_u32 vcc, 0, v{TMP}")
def untag(r, n):
    for m in range(n): E(f"v_and_b32 v{r+m}, 0xffffff00, v{r+m}")
def gather8(name, soff, pl, sleep):
    E(f"s_mov_b32 s{sSPIN}, {P['spin']}\nL_poll{name}:")
    E(f"buffer_load_dwordx4 {vr(PL)}, v{vOP}, {srd(SWS)}, s{soff} offen {pl}")
    E(f"buffer_load_dwordx4 {vr(PL+4)}, v{vOP}, {srd(SWS)}, s{soff} offen offset:1024 {pl}")
    E("s_waitcnt vmcnt(0)")
    tag_check(PL, 2)
    if sleep:
        E(f"s_cbranch_vccz L_got{name}\ns_sleep {sleep}\ns_sub_u32 s{sSPIN}, s{sSPIN}, 1\ns_cbranch_scc0 L_poll{name}\nL_got{name}:")
    else:
        E(f"s_sub_u32 s{sSPIN}, s{sSPIN}, 1\ns_cbranch_scc1 L_got{name}\ns_cbranch_vccnz L_poll{name}\nL_got{name}:")
    untag(PL, 8)
    for m in range(4): E(f"v_add_f32 v{PL+m}, v{PL+m}, v{PL+4+m}")
    for sw in ("v_permlane32_swap_b32", "v_permlane16_swap_b32"):
        for m in range(4): E(f"v_mov_b32 v{PL+4+m}, v{PL+m}")
        for m in range(4): E(f"{sw} v{PL+4+m}, v{PL+m}")
        for m in range(4): E(f"v_add_f32 v{PL+m}, v{PL+4+m}, v{PL+m}")
def publish(us):
    E(f"s_cmp_eq_u32 s{sW}, {us[-1]}\ns_cbranch_scc0 L_pub{us[-1]}")
    for n, u in enumerate(us):
        for m in range(4): E(f"ds_read_b128 {vr(S+m*4)}, v{vSCR} offset:{u*4096 + m*16}")
        E("s_waitcnt lgkmcnt(0)")
        for st in (8, 4, 2):
            for m in range(st): E(f"v_add_f32 v{S+m}, v{S+m}, v{S+m+st}")
        E(f"v_add_f32 v{WT+n}, v{S}, v{S+1}\nv_bfi_b32 v{WT+n}, s{sMASK}, v{vTG1}, v{WT+n}")
    for n, u in enumerate(us):
        E(f"s_add_u32 s{sA}, s{sSC}, {(u & 1) * HB + (u >> 1) * 65536}\ns_add_u32 s{sA}, s{sA}, s{sF0}")
        if "s" not in P["nosync"]: E(f"buffer_store_dword v{WT+n}, v{vL4}, {srd(SWS)}, s{sA} offen {STPOL}")
    E(f"L_pub{us[-1]}:")
def leader(ev):
    if "l" in P["nosync"] or not P["lead"]: return
    E(f"s_and_b32 s{sA}, s{sC}, 5\ns_lshl_b32 s{sB}, s{sW}, 3\ns_or_b32 s{sA}, s{sA}, s{sB}\ns_cmp_eq_u32 s{sA}, {4*ev}\ns_cbranch_scc0 L_ld{ev}")
    E(f"s_bfe_u32 s{sT}, s{sC}, 0x10001\ns_mul_i32 s{sT}, s{sT}, {HB}\ns_add_u32 s{sT}, s{sT}, s{sSC}\ns_add_u32 s{sT}, s{sT}, {ev*65536}")
    gather8(f"L{ev}", sT, LDPOL, 8)
    for m in range(4):
        E(f"s_lshr_b32 s{sA}, s{sNON}, {8*m}\nv_mov_b32 v{TMP+m}, s{sA}\nv_bfi_b32 v{PL+m}, s{sMASK}, v{TMP+m}, v{PL+m}")
    E(f"s_lshl_b32 s{sT}, s{sC}, 7\ns_add_u32 s{sT}, s{sT}, s{sTOT}\ns_mov_b64 exec, 0xffff")
    E(f"buffer_store_dwordx4 {vr(PL)}, v{vJ16}, {srd(SWS)}, s{sT} offen {pol('tpol')}\ns_mov_b64 exec, -1\nL_ld{ev}:")
def f_block(ks):
    E(f"s_mul_i32 s{sB}, s{sW}, {BB_*512}\ns_mul_i32 s{sT}, s{sC}, {CB*512}\ns_add_u32 s{sB}, s{sB}, s{sT}\ns_lshl_b32 s{sT}, s{sW}, 14")
    for t in range(16):
        if P["noF"]: continue
        h.window(P["FW"])
        E(f"s_add_u32 m0, s{sT}, {t*1024}\ns_add_u32 s{sA}, s{sB}, {ks*524288 + t*32768}")
        h.issue(f"buffer_load_dwordx4 v{vD+(t&7)}, {srd(SF)}, s{sA} offen {EFPOL} lds")
    h.drain()
    for bb in range(2):
        for w_ in range(4):
            x = ((w_ & 1) + 2 * bb + (w_ >> 1) * (W1 // 2048)) * 16
            for hh in range(2): E(f"v_xor_b32 v{TMP+hh}, {x}, v{vFA+hh}")
            for hb in range(2):
                for hh in range(2):
                    E(f"ds_read_b64_tr_b16 {ar(aFT + (((bb*4+w_)*2+hb)*2+ks)*4 + hh*2, 2)}, v{TMP+hh} offset:{hb*8}")
            if w_ & 1: E("s_waitcnt lgkmcnt(0)")
def xg(op, r):
    for sw in ("v_permlane32_swap_b32", "v_permlane16_swap_b32"):
        E(f"v_mov_b32 v{TMP+1}, v{r}\n{sw} v{TMP+1}, v{r}\n{op} v{r}, v{TMP+1}, v{r}")
def softmax(ev):
    E(f"s_cmp_eq_u32 s{sW}, 0\ns_cbranch_scc0 L_sm{ev}")
    if "l" not in P["nosync"]:
        if P["lead"]: E(f"s_add_u32 s{sA}, s{sTOT}, {ev*512}")
        else: E(f"s_add_u32 s{sA}, s{sSC}, {ev*65536}")
        E(f"s_mov_b32 s{sSPIN}, {P['spin']}\nL_sc{ev}:")
        for m, o in enumerate((0, 16, 128, 144)): E(f"buffer_load_dwordx4 {vr(S+m*4)}, v{vSC}, {srd(SWS)}, s{sA} offen offset:{o} {LDPOL}")
        E("s_waitcnt vmcnt(0)")
        tag_check(S, 4)
        E(f"s_cbranch_vccz L_sc_ok{ev}\ns_sleep 8\ns_sub_u32 s{sSPIN}, s{sSPIN}, 1\ns_cbranch_scc0 L_sc{ev}\nL_sc_ok{ev}:")
    untag(S, 16)
    if not P["lead"]:
        for ctl in ("quad_perm:[2,3,0,1]", "row_ror:4", "row_ror:8"):
            for m in range(16): E(f"v_add_f32_dpp v{S+m}, v{S+m}, v{S+m} {ctl} row_mask:0xf bank_mask:0xf")
    maxtree("v_max3_f32", TMP + 2, range(S, S + 16)); xg("v_max_f32", TMP + 2)
    E(f"v_mul_f32 v{TMP+2}, s{sCE}, v{TMP+2}")
    for m in range(16): E(f"v_fma_f32 v{S+m}, v{S+m}, s{sCE}, -v{TMP+2}")
    for m in range(16): E(f"v_exp_f32 v{S+m}, v{S+m}")
    for m in range(4): E(f"v_add_f32 v{TMP+4+m}, v{S+m}, v{S+m+4}")
    for m in range(4): E(f"v_add_f32 v{TMP+8+m}, v{S+m+8}, v{S+m+12}")
    for m in range(4): E(f"v_add_f32 v{TMP+4+m}, v{TMP+4+m}, v{TMP+8+m}")
    E(f"v_add_f32 v{TMP+4}, v{TMP+4}, v{TMP+5}\nv_add_f32 v{TMP+6}, v{TMP+6}, v{TMP+7}\nv_add_f32 v{TMP+3}, v{TMP+4}, v{TMP+6}")
    xg("v_add_f32", TMP + 3)
    E(f"v_rcp_f32 v{TMP+3}, v{TMP+3}")
    for m in range(16): E(f"v_mul_f32 v{S+m}, v{S+m}, v{TMP+3}")
    for m in range(8): E(f"v_cvt_pk_bf16_f32 v{PB+m}, v{S+2*m}, v{S+2*m+1}")
    E(f"ds_write_b128 v{vPB}, {vr(PB)}\nds_write_b128 v{vPB}, {vr(PB+4)} offset:1024\ns_waitcnt lgkmcnt(0)\nL_sm{ev}:")
def weights(ev):
    E(f"ds_read_b128 {vr(PB)}, v{vPB}\nds_read_b128 {vr(PB+4)}, v{vPB} offset:1024")
    E("s_mov_b32 s100, 0x00030003\ns_mov_b32 s101, 0x00030003\ns_waitcnt lgkmcnt(0)")
    for bb in range(2):
        for w_ in range(4):
            for ks in range(2):
                for hb in range(2):
                    c_ = "0" if ks == 0 else vr(DD + hb * 4)
                    E(f"v_mfma_f32_16x16x32_bf16 {vr(DD+hb*4)}, {ar(aFT + (((bb*4+w_)*2+hb)*2+ks)*4)}, {vr(PB+ks*4)}, {c_}")
            for kk in range(4): E(f"v_cvt_pk_bf16_f32 v{WT+kk}, v{DD+2*kk}, v{DD+2*kk+1}")
            E(f"s_mov_b64 exec, s[100:101]\nds_write_b128 v{vWW}, {vr(WT)} offset:{ev*4096 + bb*512 + w_*128}\ns_mov_b64 exec, -1")
    E("s_waitcnt lgkmcnt(0)")
def prefetch():
    E(f"s_lshl_b32 s{sA}, s2, 12\ns_lshl_b32 s{sB}, s{sW}, 10\ns_add_u32 s{sA}, s{sA}, s{sB}\nv_lshlrev_b32 v{TMP}, 4, v{vL}")
    if "E" in P["pf"]: h.issue(f"buffer_load_dwordx4 {vr(PL)}, v{TMP}, {srd(SE)}, s{sA} offen {pol('pfpol')}")
    if "F" in P["pf"]: h.issue(f"buffer_load_dwordx4 {vr(PL+4)}, v{TMP}, {srd(SF)}, s{sA} offen {pol('pfpol')}")
if P["pf"] and P["pfat"] < 0: prefetch()
for k in BARS:
    if k in SBAR:
        E("s_barrier"); e_dma(0)
        if P["early1"]: e_dma(1)
    elif k in EBAR:
        B = EBAR.index(k)
        h.wait(("D", B))
        E("s_barrier")
        if P["late"] and P["early1"]:
            if 0 < B < 3: e_dma(B + 1)
        elif B < 3: e_dma(B + 1)
        if B == 2: nonce_load()
        if B == 3 and P["pfF"] != "-": l2_touch(SF, P["pfF"], PL + 12)
        if B == 3: nonce_make()
    elif k in UBAR:
        u = UBAR.index(k)
        E("s_barrier")
        if not P["merge"]: publish([u])
        elif u & 1: publish([u - 1, u])
        for bb in range(2):
            if int(P["FB"][bb]) == u + 1:
                f_block(bb)
                if P["hst"]: E(f"s_memrealtime s[{70+2*bb}:{71+2*bb}]\ns_waitcnt lgkmcnt(0)")
        if u == 1: leader(0)
        if u == 2: softmax(0)
    elif k in LBAR:
        E("s_barrier"); leader(1)
    elif k in PBAR:
        E("s_barrier"); weights(PBAR.index(k))
    elif k == 320:
        E("s_barrier"); softmax(1)
    else:
        E("s_barrier")
E("s_barrier")
for w_ in range(4): E(f"ds_read_b64 {vr(S+w_*2, 2)}, v{vOR} offset:{w_*512}")
E("s_waitcnt lgkmcnt(0)")
E(f"v_add_f32 v{S}, v{S}, v{S+2}\nv_add_f32 v{S+1}, v{S+1}, v{S+3}\nv_add_f32 v{S+4}, v{S+4}, v{S+6}\nv_add_f32 v{S+5}, v{S+5}, v{S+7}")
E(f"v_add_f32 v{S}, v{S}, v{S+4}\nv_add_f32 v{S+1}, v{S+1}, v{S+5}\nv_bfi_b32 v{S}, s{sMASK}, v{vTGA}, v{S}\nv_bfi_b32 v{S+1}, s{sMASK}, v{vTGB}, v{S+1}")
E(f"buffer_store_dwordx2 {vr(S, 2)}, v{vOS}, {srd(SWS)}, s{sO} offen {pol('opol')}")
E(f"s_cmp_eq_u32 s{sW}, 0\ns_cbranch_scc0 L_done")
if P["stamps"]: E("s_memrealtime s[86:87]")
gather8("O", sOP, "sc1", P["psleep"])
E(f"v_cvt_pk_bf16_f32 v{PL+4}, v{PL}, v{PL+1}\nv_cvt_pk_bf16_f32 v{PL+5}, v{PL+2}, v{PL+3}")
E("s_mov_b64 exec, 0xffff")
E(f"buffer_store_dwordx2 {vr(PL+4, 2)}, v{vOUT}, {srd(SO)}, s{sOUT} offen {pol('outpol')}")
if P["stamps"]:
    E("s_waitcnt vmcnt(0)\ns_memrealtime s[92:93]\ns_getreg_b32 s88, hwreg(HW_REG_XCC_ID)")
    E(f"v_mov_b32 v{TMP}, 0\nds_read_b128 v[104:107], v{TMP}\nds_read_b128 v[108:111], v{TMP} offset:16\ns_waitcnt lgkmcnt(0)")
    E("s_sub_u32 s86, s86, s90")
    for m in range(8): E(f"v_subrev_u32 v{104+m}, s90, v{104+m}")
    for m, sr in enumerate((90, 91, 92, 93, 88, 84, 86, sSPIN)): E(f"v_mov_b32 v{96+m}, s{sr}")
    E("v_mov_b32 v101, v111")
    if P["hst"]: E("s_sub_u32 s70, s70, s90\ns_sub_u32 s72, s72, s90\nv_mov_b32 v109, s70\nv_mov_b32 v110, s72")
    if P["dbgst"]:
        build_srd(SD, 16, 256)
        E(f"s_mov_b64 exec, 1\nv_not_b32 v{TMP}, v96\nv_add_u32 v{TMP+1}, v96, v111")
        E(f"buffer_atomic_umax v98, off, {srd(SD)}, 0 sc1\nbuffer_atomic_umax v{TMP}, off, {srd(SD)}, 0 offset:4 sc1\nbuffer_atomic_umax v{TMP+1}, off, {srd(SD)}, 0 offset:8 sc1")
        E(f"s_cmp_eq_u32 s2, 0\ns_cbranch_scc0 L_done\nbuffer_store_dwordx4 v[104:107], off, {srd(SD)}, 0 offset:16\nbuffer_store_dwordx4 v[108:111], off, {srd(SD)}, 0 offset:32\ns_branch L_done")
    build_srd(SWS, 18, 1 << 30)
    E(f"s_lshl_b32 s{sA}, s2, 6\ns_add_u32 s{sA}, s{sA}, 0x20000000\ns_mov_b64 exec, 1")
    for m in range(4): E(f"buffer_store_dwordx4 {vr(96+m*4)}, off, {srd(SWS)}, s{sA} offset:{m*16}")
E("L_done:\ns_endpgm")
E.raw('.section .rodata,"a"\n.p2align 6')
E.raw(f""".amdhsa_kernel {NAME}
  .amdhsa_next_free_vgpr 256
  .amdhsa_next_free_sgpr 102
  .amdhsa_accum_offset 128
  .amdhsa_group_segment_fixed_size 0
  .amdhsa_float_denorm_mode_32 3
  .amdhsa_kernarg_size 64
  .amdhsa_user_sgpr_count 2
  .amdhsa_user_sgpr_kernarg_segment_ptr 1
  .amdhsa_system_sgpr_workgroup_id_x 1
.end_amdhsa_kernel""")
open(out, "w").write(E.text())
print(out, "instructions", E.count, "auto nops", E.nops, file=sys.stderr)
```

```python
import sys, struct, math
from emit import Emitter

P = dict(X=5, XE=10, NE=4, XE1=6, NE1=0, XP="", X0=0, N0=0, first=5, stamps=0, fine="", spin=1 << 20, prio=1,
         D0=4, D1=3, FW=3, PB0=240, PB1=352, SM1=320, noE=0, noF=0, nosync="", stpol="sc1", ldpol="sc1", HB=0x100000,
         outpol="", psleep=0, npoll=1, il2=1, EB="12,32,64,96", x4=1, jit=0, hoist=1, ks=0, vs=0, XR="", al=0, frot=0, fdelay=0, lead=0, LB=292, stonly=0, stmul=1, hst=0)
out = sys.argv[1]
for a in sys.argv[2:]:
    k, v = a.split("="); P[k] = int(v, 0) if isinstance(P[k], int) else v
def pol(k): return P[k].replace("+", " ")
NAME = "standalone__low_rank_proj_linformer__decode_kernel"
E = Emitter()

def srd(n): return f"s[{n}:{n+3}]"
def vr(n, k=4): return f"v[{n}:{n+k-1}]"
def ar(n, k=4): return f"a[{n}:{n+k-1}]"
SK, SV, SE, SF, SQ, SO, SWS = 20, 24, 28, 32, 36, 40, 48
sW, sGRP, sC, sKV, sT, sA, sB, sSELL, sSELH, sCE, sE0, sM, sSC, sO, sOP, sOUT, sSPIN, sF0 = 3, *range(52, 69)
sNON, sSELA, sSELB, sMASK = 94, 95, 96, 97
HB = P["HB"]; OOFF = 0x40000; TOFF = 0xC0000; sTOT = 70
L_SC = 65536; L_OL = L_SC + 8192; L_WA = L_OL + 8192; L_PB = L_WA + 8192; LDS_BYTES = L_PB + 2048
G1, W1 = 16384, 8192

class Q:
    def __init__(s): s.n = 0; s.done = 0; s.tag = {}
    def issue(s, text, tag=None):
        E(text); s.n += 1
        if tag is not None: s.tag[tag] = s.n
    def wait(s, tag):
        idx = s.tag[tag]
        if idx <= s.done: return
        assert s.n - idx <= 63
        E(f"s_waitcnt vmcnt({s.n - idx})"); s.done = idx
    def window(s, w):
        if w and s.n - s.done >= w: E(f"s_waitcnt vmcnt({w-1})"); s.done = s.n - (w - 1)
    def drain(s): E("s_waitcnt vmcnt(0)"); s.done = s.n
def build_srd(n, lo, size):
    E(f"s_mov_b32 s{n}, s{lo}\ns_mov_b32 s{n+1}, s{lo+1}\ns_mov_b32 s{n+2}, {size}\ns_mov_b32 s{n+3}, 0x00020000")
def maxtree(op, dst, regsl):
    r = list(regsl)
    E(f"{op} v{dst}, v{r[0]}, v{r[1]}, v{r[2]}"); r = r[3:]
    while len(r) >= 2: E(f"{op} v{dst}, v{dst}, v{r[0]}, v{r[1]}"); r = r[2:]
    if r: E(f"{op} v{dst}, v{dst}, v{r[0]}, v{r[0]}")

def tile(T):
    if T < 16 or (T < 32 and P["il2"]): return (T >> 4) * 2 + ((T >> 1) & 1), ((T >> 2) & 3) * 2 + (T & 1)
    return (T >> 3) & 3, T & 7

EBAR = [int(x) for x in P["EB"].split(",")]
KS, VS = P["ks"], P["vs"]
UBAR = [138, 265] if KS else [130, 258]
WBAR = [258] if KS else []
PBAR = [P["PB0"], P["PB1"]]
XBAR = [P["SM1"], 384]
LBAR = [P["LB"]] if P["lead"] else []
BARS = sorted(EBAR + UBAR + PBAR + XBAR + WBAR + LBAR)

E.raw(f"; @launch grid=(256,1,1) block=(512,1,1) lds={LDS_BYTES}")
E.raw('.amdgcn_target "amdgcn-amd-amdhsa--gfx950"\n.text')
E.raw(f".globl {NAME}\n.p2align 8\n.type {NAME},@function\n{NAME}:")
E("s_load_dwordx16 s[4:19], s[0:1], 0")
if P["stamps"]: E("s_memrealtime s[90:91]")
E("s_cmp_ge_u32 s2, 256\ns_cbranch_scc1 L_done")
vL, vJ, vG = 0, 126, 127
E(f"v_lshrrev_b32 v1, 6, v0\nv_and_b32 v{vL}, 63, v0")
E(f"v_readfirstlane_b32 s{sW}, v1")
E(f"v_and_b32 v{vJ}, 15, v{vL}\nv_lshrrev_b32 v{vG}, 4, v{vL}")
E(f"s_lshr_b32 s{sGRP}, s2, 3\ns_and_b32 s{sC}, s2, 7")
if P["jit"]:
    E(f"s_mul_i32 s{sA}, s2, 37\ns_mul_i32 s{sB}, s{sW}, {P['jit'] & 1}\ns_add_u32 s{sA}, s{sA}, s{sB}\ns_lshr_b32 s{sA}, s{sA}, 2\ns_and_b32 s{sA}, s{sA}, 15\ns_cmp_lt_u32 s{sA}, 12\ns_cbranch_scc1 L_nojit")
    E(f"s_sub_u32 s{sA}, s{sA}, 11\ns_mul_i32 s{sA}, s{sA}, {P['jit']}\nL_jit:\ns_sleep 64\ns_sub_u32 s{sA}, s{sA}, 1\ns_cmp_lg_u32 s{sA}, 0\ns_cbranch_scc1 L_jit\nL_nojit:")
E(f"s_cmp_ge_u32 s{sW}, 4\ns_cbranch_scc0 L_stream")

vD, vFA, vSC, vSCR, vL4, vOR, vOS, vOP, vOUT, vRDY, vWW, vTG1, vTGA, vTGB, vPB, vBW, vBR, vBS = 4, 12, *range(16, 32)
vTG = 112
S, PB, DD, WT, TMP, PL = 32, 48, 56, 64, 68, 80
aFT = 0
h = Q()
E(f"s_sub_u32 s{sW}, s{sW}, 4")
E(f"v_lshrrev_b32 v{TMP+1}, 5, v{vL}\nv_and_b32 v{TMP}, 31, v{vL}\nv_xor_b32 v{TMP}, v{TMP}, v{TMP+1}\nv_lshlrev_b32 v{TMP}, 4, v{TMP}\nv_lshl_add_u32 v{vD}, v{TMP+1}, 14, v{TMP}")
for t in range(1, 8): E(f"v_xor_b32 v{vD+t}, {t*32}, v{vD}")
E(f"s_lshl_b32 s{sB}, s{sC}, 11\ns_lshl_b32 s{sA}, s{sW}, 18\ns_add_u32 s{sE0}, s{sB}, s{sA}\ns_lshl_b32 s{sM}, s{sW}, 13")
E(f"s_mov_b32 s{SE+2}, {1<<20}\ns_mov_b32 s{SE+3}, 0x00020000")
E("s_waitcnt lgkmcnt(0)")
E(f"s_mov_b32 s{SE}, s10\ns_mov_b32 s{SE+1}, s11")
def e_dma(B):
    for t in range(8):
        if P["noE"]: h.tag[("D", B)] = 0; continue
        h.window(P["D1" if B else "D0"])
        E(f"s_add_u32 m0, s{sM}, {(B & 1) * 32768 + t * 1024}")
        E(f"s_add_u32 s{sA}, s{sE0}, {t * 32768 + B * 512}")
        h.issue(f"buffer_load_dwordx4 v{vD+t}, {srd(SE)}, s{sA} offen nt lds", ("D", B))
e_dma(0)
E("s_branch L_helper")

E("L_stream:")
vKV, vEA, vSCW, vOW, vWA, vQ = 1, 2, 3, 4, 5, 6
RING, NSLOT = 8, 12
VBA, VBB, WA = 56, 88, 120
TT, TBO, ACK2, TBE, ACK1, vEB = 56, 64, 68, 88, 92, 120
def TB(T): return TBO if T & 1 else TBE
def ACK(u): return ACK2 if u & 1 else ACK1
def QR(u): return 84 if u == 3 else 108 + 4 * u
aE, aV = 0, 0
q = Q()
def win(k):
    T = k >> 3
    if T >= 64 - P["NE"]: return P["XE"]
    if T >= 64 - P["NE1"]: return P["XE1"]
    for part in filter(None, P["XR"].split("/")):
        lo, hi, pat = part.split(",")
        if int(lo) <= k < int(hi): return int(pat[k % len(pat)], 16)
    if T < P["N0"]: return P["X0"]
    if P["XP"]: return int(P["XP"][k % len(P["XP"])], 16)
    return P["X"]
next_load = [0]; based = [0]
sT2 = 69
def tile_base(T):
    u, b = tile(T)
    off = u * 2097152 + (b & 1) * 4096 + (b >> 1) * 65536
    r = sT2 if T & 1 and P["hoist"] else sT
    E(f"s_add_u32 s{r}, s{sKV}, {off}" if off else f"s_mov_b32 s{r}, s{sKV}")
    based[0] = T + 1
def issue_load():
    n = next_load[0]; next_load[0] += 1
    T, i = n >> 3, n & 7
    if based[0] <= T: tile_base(T)
    r = RING + (n % NSLOT) * 4
    q.issue(f"buffer_load_dwordx4 {vr(r)}, v{vKV}, {srd(SK if T < 32 else SV)}, s{sT2 if T & 1 and P['hoist'] else sT} offen offset:{i*256} nt", ("ld", n))
E(f"v_lshlrev_b32 v{vQ}, 4, v{vJ}\nv_and_b32 v7, 1, v{vG}\nv_lshl_add_u32 v{vKV}, v7, 15, v{vQ}\nv_lshrrev_b32 v2, 1, v{vG}\nv_lshl_add_u32 v{vKV}, v2, {G1.bit_length()-1}, v{vKV}")
E(f"s_lshl_b32 s{sKV}, s{sGRP}, 23\ns_lshl_b32 s{sA}, s{sC}, 18\ns_add_u32 s{sKV}, s{sKV}, s{sA}")
E(f"s_and_b32 s{sE0}, s{sW}, 1\ns_lshl_b32 s{sA}, s{sE0}, 11\ns_add_u32 s{sKV}, s{sKV}, s{sA}\ns_lshr_b32 s{sM}, s{sW}, 1\ns_lshl_b32 s{sA}, s{sM}, {W1.bit_length()-1}\ns_add_u32 s{sKV}, s{sKV}, s{sA}")
E(f"s_lshl_b32 s{sB}, s{sGRP}, 10")
E(f"s_mov_b32 s{SK+2}, {1<<28}\ns_mov_b32 s{SK+3}, 0x00020000\ns_mov_b32 s{SQ+2}, 32768\ns_mov_b32 s{SQ+3}, 0x00020000")
E("s_waitcnt lgkmcnt(0)")
E(f"s_mov_b32 s{SK}, s6\ns_mov_b32 s{SK+1}, s7\ns_mov_b32 s{SQ}, s4\ns_mov_b32 s{SQ+1}, s5")
for n in range(P["first"]): issue_load()
if P["prio"]: E(f"s_setprio {P['prio']}")
E(f"s_mul_i32 s{sA}, s{sM}, {W1//2048}\ns_add_u32 s{sA}, s{sA}, s{sE0}\nv_lshlrev_b32 v7, 4, v7\nv_lshl_add_u32 v7, v2, {(G1//2048).bit_length()-1}, v7\nv_add_u32 v7, s{sA}, v7")
E(f"v_xor_b32 v7, v7, v{vJ}\nv_lshlrev_b32 v7, 4, v7\nv_lshl_add_u32 v{vEA}, v{vJ}, 9, v7\nv_xor_b32 v{vEB}, 32, v{vEA}")
E(f"s_lshl_b32 s{sA}, s{sW}, 4\ns_add_u32 s{sA}, s{sA}, {L_SC}\nv_lshlrev_b32 v7, 6, v{vJ}\nv_lshl_add_u32 v7, v{vG}, 2, v7\nv_add_u32 v{vSCW}, s{sA}, v7")
E(f"s_lshl_b32 s{sA}, s{sW}, 9\ns_add_u32 s{sA}, s{sA}, {L_OL}\nv_lshlrev_b32 v7, 5, v{vJ}\nv_add_u32 v{vOW}, s{sA}, v7")
E(f"s_lshl_b32 s{sA}, s{sW}, 7\ns_add_u32 s{sA}, s{sA}, {L_WA}\nv_and_b32 v7, 1, v{vJ}\nv_lshlrev_b32 v7, 6, v7\nv_lshl_add_u32 v7, v{vG}, 4, v7\nv_add_u32 v{vWA}, s{sA}, v7")
for u in range(4): q.issue(f"buffer_load_dwordx4 {vr(QR(u))}, v{vQ}, {srd(SQ)}, s{sB} offen offset:{u*256} nt", ("q", u))
build_srd(SV, 8, 1 << 28)
E(f"s_mov_b32 s{sSELL}, 0x05040100\ns_mov_b32 s{sSELH}, 0x07060302")

def vbuf(T): return VBB if (T & 1) == 0 else VBA
def v_finish(T, es):
    for e in es:
        c_ = "0" if (T & 7) == 0 else ar(aV + e * 4)
        E(f"v_mfma_f32_16x16x32_bf16 {ar(aV+e*4)}, {vr(WA+(T&1)*4)}, {vr(vbuf(T)+e*4)}, {c_}")
def v_epi(u, es=range(8)):
    E("s_mov_b64 exec, 0xffff")
    for e in es: E(f"ds_write_b32 v{vOW}, a{aV + e*4 + (u & 1)} offset:{u*2048 + e*4}")
    E("s_mov_b64 exec, -1")
def dot(kk, c4):
    if 0 <= kk < 256: E(f"v_dot2_f32_bf16 v{TT+(kk&7)}, v{RING+(kk%NSLOT)*4+c4}, v{QR(tile(kk>>3)[0])+c4}, {'0' if c4 == 0 else 'v%d' % (TT+(kk&7))}")
def cvt(T, m): E(f"v_cvt_pk_bf16_f32 v{TB(T)+m}, v{TT+2*m}, v{TT+2*m+1}")
def kmma(T, blk, k):
    u, b_ = tile(T)
    if T < 16: assert EBAR[b_ >> 1] + 4 <= k
    c_ = "0" if b_ == 0 else vr(ACK(u) + blk * 4)
    E(f"v_mfma_f32_16x16x32_bf16 {vr(ACK(u)+blk*4)}, {vr(TB(T))}, {ar(aE+(b_*4+blk)*4)}, {c_}")
def perms(kodd, c4s):
    T, m = kodd >> 3, (kodd & 7) >> 1
    r, rp = RING + (kodd % NSLOT) * 4, RING + ((kodd - 1) % NSLOT) * 4
    for c4 in c4s:
        E(f"v_perm_b32 v{vbuf(T)+(2*c4)*4+m}, v{r+c4}, v{rp+c4}, s{sSELL}")
        E(f"v_perm_b32 v{vbuf(T)+(2*c4+1)*4+m}, v{r+c4}, v{rp+c4}, s{sSELH}")
def k_epi(u):
    a = ACK(u)
    for b in range(4): E(f"v_add_f32 v{a+b*4}, v{a+b*4}, v{a+b*4+1}")
    for b in range(4): E(f"v_add_f32 v{a+b*4+2}, v{a+b*4+2}, v{a+b*4+3}")
    for b in range(4): E(f"v_add_f32 v{a+b*4}, v{a+b*4}, v{a+b*4+2}")
    for b in range(4): E(f"ds_write_b32 v{vSCW}, v{a+b*4} offset:{(u & 1)*4096 + b*1024}")
last_tile = {tile(T)[0]: T for T in range(32)}
QL = P["first"]
lds_pending = False
for k in range(512):
    T, i = k >> 3, k & 7
    if i == 0: E(f"; ---- tile {T}")
    if P["stamps"] and not P["fine"] and i == 0 and T % 8 == 0 and T: E(f"s_memrealtime s[{70+2*(T//8-1)}:{71+2*(T//8-1)}]")
    if P["al"] == 1: E.raw("  .p2align 3"); E("s_nop 0")
    if P["al"] == 2: E.raw("  .p2align 3")
    if P["al"] == 4: E.raw("  .p2align 4")
    if P["al"] == 3 and k == 0: E("s_nop 0")
    q.wait(("ld", k))
    if P["fine"]:
        fs = [int(x) for x in P["fine"].split(",")]
        if k in fs: E(f"s_memrealtime s[{70+2*fs.index(k)}:{71+2*fs.index(k)}]")
    while next_load[0] < min(512, k + win(k) + 1): issue_load()
    assert not (k <= QL and next_load[0] > NSLOT), "ring slot reused before its row was consumed"
    oldest = next_load[0] - 1 - NSLOT
    assert k <= QL or oldest + ((3 if KS else 0) if oldest < 256 else ((oldest & 1) ^ 1) + (1 if VS else 0)) < k
    if k in BARS: E("s_waitcnt lgkmcnt(0)\ns_barrier"); lds_pending = False
    elif lds_pending and (i == 0 or k in (20, 510)): E("s_waitcnt lgkmcnt(0)"); lds_pending = False
    if k == QL: q.wait(("q", 3))
    if KS:
        if k == QL:
            for d in range(4):
                for kk in range(k + 1 - d): dot(kk, d)
        elif k > QL:
            for d in range(4): dot(k - d, d)
        if k >= 5 and (k - 5) & 1 == 0 and k - 5 < 256: cvt((k - 5) >> 3, ((k - 5) & 7) >> 1)
        if i >= 4 and 1 < T <= 32: kmma(T - 1, i - 4, k)
        if T == 2 and i < 4: kmma(0, i, k)
        for u in range(4):
            if k == 8 * (last_tile[u] + 2): k_epi(u)
    else:
        if i == 0 and 0 < T <= 32:
            for m in range(4): cvt(T - 1, m)
        if T < 32:
            for kk in ([] if k < QL else range(k + 1) if k == QL else [k]):
                for c4 in range(4): dot(kk, c4)
        if i == 0 and 0 < T <= 32:
            for Tf in {1: [], 2: [0, 1]}.get(T, [T - 1]):
                for blk in range(4): kmma(Tf, blk, k)
        for u in range(4):
            if k == 8 * (last_tile[u] + 1) + 1: k_epi(u)
    if VS:
        if k > 256: perms(k, (0, 1)) if k & 1 else perms(k - 1, (2, 3))
        if T > 32: v_finish(T - 1, (i,))
        ke = k - 2
        if ke >> 3 in (40, 48, 56): v_epi(((ke >> 3) - 40) >> 3, (ke & 7,))
    else:
        if T > 32 and i in (0, 2, 4, 6): v_finish(T - 1, (i, i + 1))
        if T >= 32 and i & 1: perms(k, range(4))
        if T in (40, 48, 56) and i == 7: v_epi((T - 40) >> 3)
    for d in range(4):
        if k - d in EBAR:
            B = EBAR.index(k - d); b0 = d >> 1; lds_pending = True
            for blk in (2 * (d & 1), 2 * (d & 1) + 1):
                E(f"ds_read_b128 {ar(aE + ((2*B+b0)*4+blk)*4)}, v{vEB if b0 else vEA} offset:{(B & 1)*32768 + blk*8192}")
    if T >= 32 and i == 3:
        E(f"ds_read_b128 {vr(WA+(T&1)*4)}, v{vWA} offset:{((T-32)>>4)*4096 + (T&7)*512}"); lds_pending = True
    if P["hoist"] and (next_load[0] & 7) >= 4 and based[0] == (next_load[0] >> 3) + 1 and based[0] < 64: tile_base(based[0])
if P["stamps"]: E("s_memrealtime s[84:85]")
if VS: perms(511, (2, 3))
v_finish(63, range(8))
v_epi(3)
if P["stamps"]:
    E(f"s_cmp_eq_u32 s{sW}, 0\ns_cbranch_scc0 L_nost\ns_waitcnt lgkmcnt(0)")
    for m, sr in enumerate((70, 72, 74, 76, 78, 80, 82, 84)): E(f"v_mov_b32 v{8+m}, s{sr}")
    E("v_mov_b32 v7, 0\nds_write_b128 v7, v[8:11]\nds_write_b128 v7, v[12:15] offset:16\nL_nost:")
E("s_waitcnt lgkmcnt(0)\ns_barrier\ns_endpgm")

E("L_helper:")
e_dma(1)
build_srd(SF, 12, 1 << 20); build_srd(SO, 14, 32768); build_srd(SWS, 18, 1 << 30)
ce = struct.unpack("<I", struct.pack("<f", (128 ** -0.5) * math.log2(math.e)))[0]
E(f"s_mov_b32 s{sCE}, {ce:#x}\ns_lshl_b32 s{sF0}, s{sC}, 8")
if HB >= 0x20000: E(f"s_lshl_b32 s{sSC}, s{sGRP}, 11")
else:
    lg = (HB // 2048).bit_length() - 1
    E(f"s_and_b32 s{sSC}, s{sGRP}, {HB//2048 - 1}\ns_lshl_b32 s{sSC}, s{sSC}, 11\ns_lshr_b32 s{sA}, s{sGRP}, {lg}\ns_mul_i32 s{sA}, s{sA}, {2*HB}\ns_add_u32 s{sSC}, s{sSC}, s{sA}")
EVS = 65536 if HB >= 0x20000 else 131072
E(f"s_lshl_b32 s{sOP}, s{sGRP}, 14\ns_add_u32 s{sOP}, s{sOP}, {OOFF}")
E(f"s_lshl_b32 s{sA}, s{sW}, 12\ns_add_u32 s{sO}, s{sOP}, s{sA}\ns_add_u32 s{sO}, s{sO}, s{sF0}")
E(f"s_lshl_b32 s{sA}, s{sC}, 11\ns_add_u32 s{sOP}, s{sOP}, s{sA}")
E(f"s_lshl_b32 s{sOUT}, s{sGRP}, 10\ns_lshl_b32 s{sA}, s{sC}, 7\ns_add_u32 s{sOUT}, s{sOUT}, s{sA}")
E(f"s_lshl_b32 s{sA}, s{sW}, 14")
E(f"v_lshrrev_b32 v{TMP}, 2, v{vJ}\nv_lshl_add_u32 v{TMP}, v{vG}, 3, v{TMP}\nv_and_b32 v{TMP+1}, 1, v{vJ}\nv_lshlrev_b32 v{TMP+1}, 4, v{TMP+1}")
E(f"v_bfe_u32 v{TMP+2}, v{vJ}, 1, 1\nv_lshl_add_u32 v{TMP+1}, v{TMP+2}, {(G1//2048).bit_length()-1}, v{TMP+1}")
for hh in range(2):
    if hh: E(f"v_add_u32 v{TMP}, 4, v{TMP}")
    E(f"v_and_b32 v{TMP+2}, 15, v{TMP}\nv_xor_b32 v{TMP+2}, v{TMP+2}, v{TMP+1}\nv_lshlrev_b32 v{TMP+2}, 4, v{TMP+2}\nv_lshl_add_u32 v{TMP+2}, v{TMP}, 9, v{TMP+2}")
    E(f"v_add_u32 v{vFA+hh}, s{sA}, v{TMP+2}")
E(f"v_and_b32 v{TMP}, 1, v{vJ}\ns_mov_b32 s{sA}, {HB}\nv_mul_lo_u32 v{TMP+1}, s{sA}, v{TMP}\nv_lshrrev_b32 v{TMP+2}, 1, v{vJ}\nv_lshl_add_u32 v{TMP+1}, v{TMP+2}, 8, v{TMP+1}\nv_lshl_add_u32 v{vSC}, v{vG}, 5, v{TMP+1}")
if P["lead"]:
    E(f"v_lshlrev_b32 v{TMP+1}, 8, v{TMP}\nv_lshl_add_u32 v{vSC}, v{vG}, 5, v{TMP+1}\ns_lshl_b32 s{sTOT}, s{sGRP}, 10\ns_add_u32 s{sTOT}, s{sTOT}, {TOFF}")
E(f"s_mov_b32 s{sSELA}, 0x0c0c0400\ns_mov_b32 s{sSELB}, 0x04000c0c\ns_mov_b32 s{sMASK}, 0xff")
E(f"s_lshl_b32 s{sA}, s{sW}, 10\ns_add_u32 s{sA}, s{sA}, {L_WA}\nv_lshlrev_b32 v{TMP}, 6, v{TMP}\nv_lshl_add_u32 v{TMP}, v{vG}, 4, v{TMP}\nv_add_u32 v{vWW}, s{sA}, v{TMP}")
E(f"v_lshlrev_b32 v{TMP}, 6, v{vL}\nv_add_u32 v{vSCR}, {L_SC}, v{TMP}\nv_lshlrev_b32 v{vL4}, 2, v{vL}")
E(f"v_lshlrev_b32 v{TMP}, 4, v{vL}\nv_add_u32 v{vPB}, {L_PB}, v{TMP}")
E(f"s_lshl_b32 s{sA}, s{sW}, 11\ns_add_u32 s{sA}, s{sA}, {L_OL}\nv_lshlrev_b32 v{TMP}, 3, v{vL}\nv_add_u32 v{vOR}, s{sA}, v{TMP}")
E(f"v_lshrrev_b32 v{TMP}, 5, v{vL}\nv_lshlrev_b32 v{TMP}, 11, v{TMP}\nv_and_b32 v{TMP+1}, 31, v{vL}\nv_lshl_add_u32 v{vOS}, v{TMP+1}, 3, v{TMP}")
if P["x4"]:
    E(f"v_add_u32 v{vBW}, {L_PB}, v{vL4}\nv_and_b32 v{TMP}, 31, v{vL}\nv_lshlrev_b32 v{TMP}, 4, v{TMP}\nv_add_u32 v{vBR}, {L_PB}, v{TMP}")
    E(f"s_lshl_b32 s{sA}, s{sW}, 11\ns_add_u32 s{sA}, s{sA}, {L_OL}\nv_add_u32 v{vOR}, s{sA}, v{TMP}")
    E(f"v_and_b32 v{TMP}, 1, v{vG}\ns_mov_b32 s{sA}, {HB}\nv_mul_lo_u32 v{TMP+1}, s{sA}, v{TMP}\nv_lshl_add_u32 v{vBS}, v{vJ}, 4, v{TMP+1}")
    E(f"v_lshlrev_b32 v{TMP}, 11, v{TMP}\nv_lshl_add_u32 v{vOS}, v{vJ}, 4, v{TMP}")
E(f"v_lshlrev_b32 v{TMP}, 4, v{vJ}\nv_lshl_add_u32 v{vOP}, v{vG}, 8, v{TMP}\nv_lshlrev_b32 v{vOUT}, 3, v{vJ}")
def nonce_load():
    E(f"s_lshl_b32 s{sB}, s{sGRP}, 14\ns_add_u32 s{sB}, s{sB}, {OOFF}")
    h.issue(f"buffer_load_dwordx4 {vr(PL)}, off, {srd(SWS)}, s{sB} sc1 nt", "old")
def nonce_make():
    h.wait("old")
    E(f"v_perm_b32 v{TMP}, v{PL+1}, v{PL}, s{sSELA}\nv_perm_b32 v{TMP+1}, v{PL+3}, v{PL+2}, s{sSELB}\nv_or_b32 v{TMP}, v{TMP}, v{TMP+1}")
    E(f"v_readfirstlane_b32 s{sA}, v{TMP}")
    E(f"s_mul_i32 s{sNON}, s{sA}, 0x9e3779b1\ns_add_u32 s{sNON}, s{sNON}, 0x7f4a7c15\ns_lshr_b32 s{sB}, s{sNON}, 15\ns_xor_b32 s{sNON}, s{sNON}, s{sB}")
    E(f"s_xor_b32 s{sB}, s{sNON}, 2\ns_cmp_eq_u32 s{sNON}, s{sA}\ns_cselect_b32 s{sNON}, s{sB}, s{sNON}")
    E(f"v_mov_b32 v{vRDY}, s{sNON}")
    E(f"v_and_b32 v{TMP}, 3, v{vL}\nv_lshlrev_b32 v{TMP}, 3, v{TMP}\nv_lshrrev_b32 v{vTG1}, v{TMP}, v{vRDY}")
    E(f"v_and_b32 v{TMP}, 1, v{vL}\nv_lshlrev_b32 v{TMP}, 4, v{TMP}\nv_lshrrev_b32 v{vTGA}, v{TMP}, v{vRDY}\nv_lshrrev_b32 v{vTGB}, 8, v{vTGA}")
    for m in range(4): E(f"v_lshrrev_b32 v{vTG+m}, {8*m}, v{vRDY}")
def tag_check(r, n):
    for m in range(n):
        E(f"v_perm_b32 v{TMP+2*m}, v{r+4*m+1}, v{r+4*m}, s{sSELA}\nv_perm_b32 v{TMP+2*m+1}, v{r+4*m+3}, v{r+4*m+2}, s{sSELB}")
    for m in range(n): E(f"v_or_b32 v{TMP+2*m}, v{TMP+2*m}, v{TMP+2*m+1}")
    for m in range(n): E(f"v_xor_b32 v{TMP+2*m}, s{sNON}, v{TMP+2*m}")
    for m in range(1, n): E(f"v_or_b32 v{TMP}, v{TMP}, v{TMP+2*m}")
    E(f"v_cmp_ne_u32 vcc, 0, v{TMP}")
def untag(r, n):
    for m in range(n): E(f"v_and_b32 v{r+m}, 0xffffff00, v{r+m}")
def publish(ev):
    E(f"s_cmp_eq_u32 s{sW}, 3\ns_cbranch_scc0 L_pub{ev}")
    for n in range(2):
        for m in range(4): E(f"ds_read_b128 {vr(S+m*4)}, v{vSCR} offset:{n*4096 + m*16}")
        E("s_waitcnt lgkmcnt(0)")
        for st in (8, 4, 2):
            for m in range(st): E(f"v_add_f32 v{S+m}, v{S+m}, v{S+m+st}")
        E(f"v_add_f32 v{WT+n}, v{S}, v{S+1}\nv_bfi_b32 v{WT+n}, s{sMASK}, v{vTG1}, v{WT+n}")
    if P["x4"]:
        E(f"ds_write_b32 v{vBW}, v{WT}\nds_write_b32 v{vBW}, v{WT+1} offset:256\ns_waitcnt lgkmcnt(0)\nds_read_b128 {vr(S)}, v{vBR}")
        E(f"s_add_u32 s{sA}, s{sSC}, {ev * EVS}\ns_add_u32 s{sA}, s{sA}, s{sF0}\ns_waitcnt lgkmcnt(0)\ns_mov_b32 exec_hi, 0")
        if P["stonly"]: E(f"s_and_b32 s{sB}, s{sGRP}, {P['stonly']}\ns_cbranch_scc1 L_nost{ev}")
        for m in range(P["stmul"] if "s" not in P["nosync"] else 0):
            if m: E(f"s_add_u32 s{sA}, s{sA}, 0x200000")
            E(f"buffer_store_dwordx4 {vr(S)}, v{vBS}, {srd(SWS)}, s{sA} offen {pol('stpol')}")
        if P["stonly"]: E(f"L_nost{ev}:")
        E("s_mov_b64 exec, -1")
    else:
        for n in range(2):
            E(f"s_add_u32 s{sA}, s{sSC}, {n * HB + ev * EVS}\ns_add_u32 s{sA}, s{sA}, s{sF0}")
            if "s" not in P["nosync"]: E(f"buffer_store_dword v{WT+n}, v{vL4}, {srd(SWS)}, s{sA} offen {pol('stpol')}")
    E(f"L_pub{ev}:")
def leader(ev):
    if "l" in P["nosync"] or not P["lead"]: return
    E(f"s_and_b32 s{sA}, s{sC}, 5\ns_lshl_b32 s{sB}, s{sW}, 3\ns_or_b32 s{sA}, s{sA}, s{sB}\ns_cmp_eq_u32 s{sA}, {4*ev + 8}\ns_cbranch_scc0 L_ld{ev}")
    E(f"s_bfe_u32 s{sT}, s{sC}, 0x10001\ns_mul_i32 s{sT}, s{sT}, {HB}\ns_add_u32 s{sT}, s{sT}, s{sSC}\ns_add_u32 s{sT}, s{sT}, {ev*EVS}")
    E(f"s_mov_b32 s{sSPIN}, {P['spin']}\nL_lp{ev}:")
    E(f"buffer_load_dwordx4 {vr(PL)}, v{vOP}, {srd(SWS)}, s{sT} offen {pol('ldpol')}")
    E(f"buffer_load_dwordx4 {vr(PL+4)}, v{vOP}, {srd(SWS)}, s{sT} offen offset:1024 {pol('ldpol')}")
    E("s_waitcnt vmcnt(0)")
    tag_check(PL, 2)
    E(f"s_cbranch_vccz L_lg{ev}\ns_sleep 8\ns_sub_u32 s{sSPIN}, s{sSPIN}, 1\ns_cbranch_scc0 L_lp{ev}\nL_lg{ev}:")
    untag(PL, 8)
    for m in range(4): E(f"v_add_f32 v{PL+m}, v{PL+m}, v{PL+4+m}")
    for sw in ("v_permlane32_swap_b32", "v_permlane16_swap_b32"):
        for m in range(4): E(f"v_mov_b32 v{PL+4+m}, v{PL+m}")
        for m in range(4): E(f"{sw} v{PL+4+m}, v{PL+m}")
        for m in range(4): E(f"v_add_f32 v{PL+m}, v{PL+4+m}, v{PL+m}")
    for m in range(4): E(f"v_bfi_b32 v{PL+m}, s{sMASK}, v{vTG+m}, v{PL+m}")
    E(f"s_lshl_b32 s{sT}, s{sC}, 7\ns_add_u32 s{sT}, s{sT}, s{sTOT}\ns_mov_b64 exec, 0xffff")
    E(f"buffer_store_dwordx4 {vr(PL)}, v{vOP}, {srd(SWS)}, s{sT} offen {pol('stpol')}\ns_mov_b64 exec, -1\nL_ld{ev}:")
def f_block(ks):
    E(f"s_lshl_b32 s{sB}, s{sW}, 9\ns_lshl_b32 s{sT}, s{sC}, 11\ns_add_u32 s{sB}, s{sB}, s{sT}\ns_lshl_b32 s{sT}, s{sW}, 14")
    if P["frot"]:
        E(f"s_and_b32 s{sA}, s{sW}, 1\ns_lshl_b32 s98, s{sA}, 13\ns_lshl_b32 s99, s{sA}, 18")
    for t in range(16):
        if P["noF"]: continue
        h.window(P["FW"])
        if P["frot"]:
            E(f"s_xor_b32 s{sA}, s98, {t*1024}\ns_add_u32 m0, s{sT}, s{sA}\ns_xor_b32 s{sA}, s99, {t*32768}\ns_add_u32 s{sA}, s{sA}, s{sB}\ns_add_u32 s{sA}, s{sA}, {ks*524288}")
        else: E(f"s_add_u32 m0, s{sT}, {t*1024}\ns_add_u32 s{sA}, s{sB}, {ks*524288 + t*32768}")
        h.issue(f"buffer_load_dwordx4 v{vD+(t&7)}, {srd(SF)}, s{sA} offen nt lds")
    h.drain()
    for bb in range(2):
        for w_ in range(4):
            x = ((w_ & 1) + 2 * bb + (w_ >> 1) * (W1 // 2048)) * 16
            for hh in range(2): E(f"v_xor_b32 v{TMP+hh}, {x}, v{vFA+hh}")
            for hb in range(2):
                for hh in range(2):
                    E(f"ds_read_b64_tr_b16 {ar(aFT + (((bb*4+w_)*2+hb)*2+ks)*4 + hh*2, 2)}, v{TMP+hh} offset:{hb*8}")
            if w_ & 1: E("s_waitcnt lgkmcnt(0)")
def xg(op, r):
    for sw in ("v_permlane32_swap_b32", "v_permlane16_swap_b32"):
        E(f"v_mov_b32 v{TMP+1}, v{r}\n{sw} v{TMP+1}, v{r}\n{op} v{r}, v{TMP+1}, v{r}")
def softmax(ev):
    E(f"s_cmp_eq_u32 s{sW}, 0\ns_cbranch_scc0 L_sm{ev}")
    if "l" not in P["nosync"]:
        E(f"s_add_u32 s{sA}, s{sTOT}, {ev*512}" if P["lead"] else f"s_add_u32 s{sA}, s{sSC}, {ev*EVS}")
        E(f"s_mov_b32 s{sSPIN}, {P['spin']}\nL_sc{ev}:")
        for m, o in enumerate((0, 16, 128, 144)): E(f"buffer_load_dwordx4 {vr(S+m*4)}, v{vSC}, {srd(SWS)}, s{sA} offen offset:{o} {pol('ldpol')}")
        E("s_waitcnt vmcnt(0)")
        tag_check(S, 4)
        E(f"s_cbranch_vccz L_sc_ok{ev}\ns_sleep 8\ns_sub_u32 s{sSPIN}, s{sSPIN}, 1\ns_cbranch_scc0 L_sc{ev}\nL_sc_ok{ev}:")
    untag(S, 16)
    for ctl in ("quad_perm:[2,3,0,1]", "row_ror:4", "row_ror:8") if not P["lead"] else ():
        for m in range(16): E(f"v_add_f32_dpp v{S+m}, v{S+m}, v{S+m} {ctl} row_mask:0xf bank_mask:0xf")
    maxtree("v_max3_f32", TMP + 2, range(S, S + 16)); xg("v_max_f32", TMP + 2)
    E(f"v_mul_f32 v{TMP+2}, s{sCE}, v{TMP+2}")
    for m in range(16): E(f"v_fma_f32 v{S+m}, v{S+m}, s{sCE}, -v{TMP+2}")
    for m in range(16): E(f"v_exp_f32 v{S+m}, v{S+m}")
    for m in range(4): E(f"v_add_f32 v{TMP+4+m}, v{S+m}, v{S+m+4}")
    for m in range(4): E(f"v_add_f32 v{TMP+8+m}, v{S+m+8}, v{S+m+12}")
    for m in range(4): E(f"v_add_f32 v{TMP+4+m}, v{TMP+4+m}, v{TMP+8+m}")
    E(f"v_add_f32 v{TMP+4}, v{TMP+4}, v{TMP+5}\nv_add_f32 v{TMP+6}, v{TMP+6}, v{TMP+7}\nv_add_f32 v{TMP+3}, v{TMP+4}, v{TMP+6}")
    xg("v_add_f32", TMP + 3)
    E(f"v_rcp_f32 v{TMP+3}, v{TMP+3}")
    for m in range(16): E(f"v_mul_f32 v{S+m}, v{S+m}, v{TMP+3}")
    for m in range(8): E(f"v_cvt_pk_bf16_f32 v{PB+m}, v{S+2*m}, v{S+2*m+1}")
    E(f"ds_write_b128 v{vPB}, {vr(PB)}\nds_write_b128 v{vPB}, {vr(PB+4)} offset:1024\ns_waitcnt lgkmcnt(0)\nL_sm{ev}:")
def weights(ev):
    E(f"ds_read_b128 {vr(PB)}, v{vPB}\nds_read_b128 {vr(PB+4)}, v{vPB} offset:1024")
    E("s_mov_b32 s100, 0x00030003\ns_mov_b32 s101, 0x00030003\ns_waitcnt lgkmcnt(0)")
    for bb in range(2):
        for w_ in range(4):
            for ks in range(2):
                for hb in range(2):
                    c_ = "0" if ks == 0 else vr(DD + hb * 4)
                    E(f"v_mfma_f32_16x16x32_bf16 {vr(DD+hb*4)}, {ar(aFT + (((bb*4+w_)*2+hb)*2+ks)*4)}, {vr(PB+ks*4)}, {c_}")
            for kk in range(4): E(f"v_cvt_pk_bf16_f32 v{WT+kk}, v{DD+2*kk}, v{DD+2*kk+1}")
            E(f"s_mov_b64 exec, s[100:101]\nds_write_b128 v{vWW}, {vr(WT)} offset:{ev*4096 + bb*512 + w_*128}\ns_mov_b64 exec, -1")
    E("s_waitcnt lgkmcnt(0)")
for k in BARS:
    if k in EBAR:
        B = EBAR.index(k)
        h.wait(("D", B))
        E("s_barrier")
        if 0 < B < 3: e_dma(B + 1)
        if B == 3: nonce_load(); nonce_make()
    elif k in UBAR:
        E("s_barrier")
        publish(UBAR.index(k))
        if k == UBAR[0]:
            f_block(0); leader(0); f_block(1)
            if P["hst"]: E("s_memrealtime s[72:73]")
            softmax(0)
            if P["hst"]: E("s_memrealtime s[74:75]\ns_waitcnt lgkmcnt(0)")
    elif k in LBAR:
        E("s_barrier"); leader(1)
    elif k in PBAR:
        E("s_barrier"); weights(PBAR.index(k))
    elif k == XBAR[0]:
        E("s_barrier"); softmax(1)
    else:
        E("s_barrier")
E("s_barrier")
if P["x4"]:
    for w_ in range(4): E(f"ds_read_b128 {vr(S+w_*4)}, v{vOR} offset:{w_*512}")
    E("s_mov_b32 exec_hi, 0\ns_waitcnt lgkmcnt(2)")
    for m in range(4): E(f"v_add_f32 v{S+m}, v{S+m}, v{S+4+m}")
    E("s_waitcnt lgkmcnt(0)")
    for m in range(4): E(f"v_add_f32 v{S+8+m}, v{S+8+m}, v{S+12+m}")
    for m in range(4): E(f"v_add_f32 v{S+m}, v{S+m}, v{S+8+m}")
    for m in range(4): E(f"v_bfi_b32 v{S+m}, s{sMASK}, v{vTG+m}, v{S+m}")
    E(f"buffer_store_dwordx4 {vr(S)}, v{vOS}, {srd(SWS)}, s{sO} offen sc1\ns_mov_b64 exec, -1")
else:
    for w_ in range(4): E(f"ds_read_b64 {vr(S+w_*2, 2)}, v{vOR} offset:{w_*512}")
    E("s_waitcnt lgkmcnt(0)")
    E(f"v_add_f32 v{S}, v{S}, v{S+2}\nv_add_f32 v{S+1}, v{S+1}, v{S+3}\nv_add_f32 v{S+4}, v{S+4}, v{S+6}\nv_add_f32 v{S+5}, v{S+5}, v{S+7}")
    E(f"v_add_f32 v{S}, v{S}, v{S+4}\nv_add_f32 v{S+1}, v{S+1}, v{S+5}\nv_bfi_b32 v{S}, s{sMASK}, v{vTGA}, v{S}\nv_bfi_b32 v{S+1}, s{sMASK}, v{vTGB}, v{S+1}")
    E(f"buffer_store_dwordx2 {vr(S, 2)}, v{vOS}, {srd(SWS)}, s{sO} offen sc1")
E(f"s_cmp_eq_u32 s{sW}, 0\ns_cbranch_scc0 L_done")
if P["stamps"]: E("s_memrealtime s[86:87]")
def poll_issue(r):
    E(f"buffer_load_dwordx4 {vr(r)}, v{vOP}, {srd(SWS)}, s{sOP} offen sc1")
    E(f"buffer_load_dwordx4 {vr(r+4)}, v{vOP}, {srd(SWS)}, s{sOP} offen offset:1024 sc1")
NP = P["npoll"]
E(f"s_mov_b32 s{sSPIN}, {P['spin']}")
if NP == 1:
    E("L_poll:")
    poll_issue(PL)
    E("s_waitcnt vmcnt(0)")
    tag_check(PL, 2)
    E(f"s_sub_u32 s{sSPIN}, s{sSPIN}, 1\ns_cbranch_scc1 L_got\ns_cbranch_vccnz L_poll\nL_got:")
else:
    for m in range(NP):
        if m and P["psleep"]: E(f"s_sleep {P['psleep']}")
        poll_issue(PL + 8 * m)
    E("L_poll:")
    for m in range(NP):
        E(f"s_waitcnt vmcnt({2*(NP-1)})")
        tag_check(PL + 8 * m, 2)
        E(f"s_cbranch_vccz L_got{m}")
        poll_issue(PL + 8 * m)
    E(f"s_sub_u32 s{sSPIN}, s{sSPIN}, 1\ns_cbranch_scc0 L_poll\ns_waitcnt vmcnt(0)\ns_branch L_got0")
    for m in range(1, NP):
        E(f"L_got{m}:")
        for x in range(8): E(f"v_and_b32 v{S+x}, 0xffffff00, v{PL+8*m+x}")
        E("s_branch L_sum")
    E("L_got0:")
R = PL if NP == 1 else S
for x in range(8): E(f"v_and_b32 v{R+x}, 0xffffff00, v{PL+x}")
if NP > 1: E("L_sum:")
for m in range(4): E(f"v_add_f32 v{R+m}, v{R+m}, v{R+4+m}")
for sw in ("v_permlane32_swap_b32", "v_permlane16_swap_b32"):
    for m in range(4): E(f"v_mov_b32 v{R+4+m}, v{R+m}")
    for m in range(4): E(f"{sw} v{R+4+m}, v{R+m}")
    for m in range(4): E(f"v_add_f32 v{R+m}, v{R+4+m}, v{R+m}")
E(f"v_cvt_pk_bf16_f32 v{R+4}, v{R}, v{R+1}\nv_cvt_pk_bf16_f32 v{R+5}, v{R+2}, v{R+3}")
E("s_mov_b64 exec, 0xffff")
E(f"buffer_store_dwordx2 {vr(R+4, 2)}, v{vOUT}, {srd(SO)}, s{sOUT} offen {pol('outpol')}")
if P["stamps"]:
    E("s_waitcnt vmcnt(0)\ns_memrealtime s[92:93]\ns_getreg_b32 s88, hwreg(HW_REG_XCC_ID)")
    E(f"v_mov_b32 v{TMP}, 0\nds_read_b128 v[56:59], v{TMP}\nds_read_b128 v[60:63], v{TMP} offset:16\ns_waitcnt lgkmcnt(0)")
    E("s_sub_u32 s86, s86, s90")
    for m in range(8): E(f"v_subrev_u32 v{56+m}, s90, v{56+m}")
    for m, sr in enumerate((90, 91, 92, 93, 88, 84, 86, sSPIN)): E(f"v_mov_b32 v{48+m}, s{sr}")
    E("v_mov_b32 v53, v63")
    if P["hst"]: E("s_sub_u32 s72, s72, s90\ns_sub_u32 s74, s74, s90\nv_mov_b32 v61, s72\nv_mov_b32 v62, s74")
    E(f"s_lshl_b32 s{sA}, s2, 6\ns_add_u32 s{sA}, s{sA}, 0x20000000\ns_mov_b64 exec, 1")
    for m in range(4): E(f"buffer_store_dwordx4 {vr(48+m*4)}, off, {srd(SWS)}, s{sA} offset:{m*16}")
E("L_done:\ns_endpgm")
E.raw('.section .rodata,"a"\n.p2align 6')
E.raw(f""".amdhsa_kernel {NAME}
  .amdhsa_next_free_vgpr 256
  .amdhsa_next_free_sgpr 102
  .amdhsa_accum_offset 128
  .amdhsa_group_segment_fixed_size 0
  .amdhsa_float_denorm_mode_32 3
  .amdhsa_kernarg_size 64
  .amdhsa_user_sgpr_count 2
  .amdhsa_user_sgpr_kernarg_segment_ptr 1
  .amdhsa_system_sgpr_workgroup_id_x 1
.end_amdhsa_kernel""")
open(out, "w").write(E.text())
print(out, "instructions", E.count, "auto nops", E.nops, file=sys.stderr)
```

```python
import sys, struct, math
from emit import Emitter

P = dict(X=5, XE=10, NE=4, XS=5, XR="", first=5, stamps=0, fine="", spin=1 << 20, prio=1,
         D0="3", D1="2", D2="12", D3="12", F0="12", F1="12", NB=3, early=1, smpos=1, PB0=246, PB1=352, SM1=320, SB=20, EB="12,44,76,108", noE=0, noF=0, nosync="",
         jit=0, force=-1, thr=90, fixt=0, fullline=0, kvpol="nt", efpol="", tE=0, tF=0, tpol="nt", pfM="EF", pfL="", pfLb=1, e0pol="", epol="", fpol="", XP="5554", XE1=7, NE1=0)
out = sys.argv[1]
for a in sys.argv[2:]:
    k, v = a.split("="); P[k] = int(v, 0) if isinstance(P[k], int) else v
NAME = "standalone__low_rank_proj_linformer__decode_kernel"
E = Emitter()

def srd(n): return f"s[{n}:{n+3}]"
def vr(n, k=4): return f"v[{n}:{n+k-1}]"
def ar(n, k=4): return f"a[{n}:{n+k-1}]"
SK, SV, SE, SF, SQ, SO, SD, SWS = 20, 24, 28, 32, 36, 40, 44, 48
sW, sGRP, sC, sKV, sT, sA, sB, sSELL, sSELH, sCE, sE0, sM, sSC, sO, sOP, sOUT, sSPIN, sT2 = 3, *range(52, 69)
sKD, sVD, sHD, sFS, sFB = 69, 88, 89, 70, 71
sNON, sSELA, sSELB, sMASK, sSIG, sF0 = 94, 95, 96, 97, 98, 99
HB = 0x100000; OOFF = 0x40000
L_SC = 65536; L_OL = L_SC + 8192; L_WA = L_OL + 8192; L_PB = L_WA + 8192; L_SG = L_PB + 2048; L_F2 = L_SG + 1024; LDS_BYTES = L_F2 + 32768

class Q:
    def __init__(s): s.n = 0; s.done = 0; s.tag = {}
    def issue(s, text, tag=None):
        E(text); s.n += 1
        if tag is not None: s.tag[tag] = s.n
    def wait(s, tag):
        idx = s.tag[tag]
        if idx <= s.done: return
        assert s.n - idx <= 63
        E(f"s_waitcnt vmcnt({s.n - idx})"); s.done = idx
    def window(s, w):
        if w and s.n - s.done >= w: E(f"s_waitcnt vmcnt({w-1})"); s.done = s.n - (w - 1)
    def drain(s): E("s_waitcnt vmcnt(0)"); s.done = s.n
def build_srd(n, lo, size):
    E(f"s_mov_b32 s{n}, s{lo}\ns_mov_b32 s{n+1}, s{lo+1}\ns_mov_b32 s{n+2}, {size}\ns_mov_b32 s{n+3}, 0x00020000")
def maxtree(op, dst, regsl):
    r = list(regsl)
    E(f"{op} v{dst}, v{r[0]}, v{r[1]}, v{r[2]}"); r = r[3:]
    while len(r) >= 2: E(f"{op} v{dst}, v{dst}, v{r[0]}, v{r[1]}"); r = r[2:]
    if r: E(f"{op} v{dst}, v{dst}, v{r[0]}, v{r[0]}")

def tile(T):
    if T < 32: return (T >> 4) * 2 + ((T >> 1) & 1), ((T >> 2) & 3) * 2 + (T & 1)
    return (T >> 3) & 3, T & 7

EBAR = [int(x) for x in P["EB"].split(",")]
SBAR = [P["SB"]]
UBAR = [130, 258]
PBAR = [P["PB0"], P["PB1"]]
XBAR = [P["SM1"], 384]
BARS = sorted(EBAR + SBAR + UBAR + PBAR + XBAR)
HELD = [T for T in range(0, 16, 4) if EBAR[T >> 2] + 4 > 8 * (T + 1)]

E.raw(f"; @launch grid=(256,1,1) block=(512,1,1) lds={LDS_BYTES}")
E.raw('.amdgcn_target "amdgcn-amd-amdhsa--gfx950"\n.text')
E.raw(f".globl {NAME}\n.p2align 8\n.type {NAME},@function\n{NAME}:")
E("s_load_dwordx16 s[4:19], s[0:1], 0")
if P["stamps"] or P["fixt"]: E("s_memrealtime s[90:91]")
E("s_cmp_ge_u32 s2, 256\ns_cbranch_scc1 L_done")
vL, vJ, vG = 0, 126, 127
E(f"v_lshrrev_b32 v1, 6, v0\nv_and_b32 v{vL}, 63, v0")
E(f"v_readfirstlane_b32 s{sW}, v1")
E(f"v_and_b32 v{vJ}, 15, v{vL}\nv_lshrrev_b32 v{vG}, 4, v{vL}")
E(f"s_lshr_b32 s{sGRP}, s2, 3\ns_and_b32 s{sC}, s2, 7")
E(f"s_lshr_b32 s{sHD}, s{sGRP}, 1\ns_lshl_b32 s{sHD}, s{sHD}, 3\ns_and_b32 s{sA}, s{sGRP}, 1\ns_add_u32 s{sHD}, s{sHD}, s{sA}")
E(f"s_lshl_b32 s{sKV}, s{sHD}, 21\ns_and_b32 s{sB}, s{sC}, 3\ns_lshl_b32 s{sA}, s{sB}, 19\ns_add_u32 s{sKV}, s{sKV}, s{sA}")
if P["jit"]:
    E(f"s_mul_i32 s{sA}, s2, 37\ns_mul_i32 s{sT}, s{sW}, {P['jit'] & 1}\ns_add_u32 s{sA}, s{sA}, s{sT}\ns_lshr_b32 s{sA}, s{sA}, 2\ns_and_b32 s{sA}, s{sA}, 15\ns_cmp_lt_u32 s{sA}, 12\ns_cbranch_scc1 L_nojit")
    E(f"s_sub_u32 s{sA}, s{sA}, 11\ns_mul_i32 s{sA}, s{sA}, {P['jit']}\nL_jit:\ns_sleep 64\ns_sub_u32 s{sA}, s{sA}, 1\ns_cmp_lg_u32 s{sA}, 0\ns_cbranch_scc1 L_jit\nL_nojit:")
E(f"s_cmp_ge_u32 s{sW}, 4\ns_cbranch_scc0 L_stream")

vD, vFA, vSC, vSCR, vL4, vOR, vOS, vOP, vOUT, vRDY, vWW, vTG1, vPB, vBW, vBR, vBS = 4, 12, *range(16, 30)
vTG = 112
S, PB, DD, WT, TMP, PL = 32, 48, 56, 64, 68, 80
aFT = 0
h = Q()
E(f"s_sub_u32 s{sW}, s{sW}, 4")
def spread(x): return (x & 3) * 16 + ((x >> 2) & 1) * 128 + ((x >> 3) & 1) * 256
E(f"v_lshrrev_b32 v{TMP+1}, 5, v{vL}\nv_xor_b32 v{TMP}, v{vJ}, v{TMP+1}\nv_and_b32 v{TMP+2}, 3, v{TMP}\nv_lshlrev_b32 v{TMP+2}, 4, v{TMP+2}")
E(f"v_lshrrev_b32 v{TMP}, 2, v{TMP}\nv_lshl_add_u32 v{TMP+2}, v{TMP}, 7, v{TMP+2}\nv_and_b32 v{TMP}, 1, v{vG}\nv_lshl_add_u32 v{TMP+2}, v{TMP}, 6, v{TMP+2}")
E(f"v_lshl_add_u32 v{vD}, v{TMP+1}, 14, v{TMP+2}")
for t in range(1, 8): E(f"v_xor_b32 v{vD+t}, {spread(2*t)}, v{vD}")
E(f"s_lshl_b32 s{sF0}, s{sB}, 12\ns_lshl_b32 s{sA}, s{sW}, 18\ns_add_u32 s{sE0}, s{sF0}, s{sA}\ns_lshl_b32 s{sM}, s{sW}, 13")
E(f"s_lshr_b32 s{sT}, s{sC}, 2\ns_lshl_b32 s{sT}, s{sT}, 9\ns_add_u32 s{sT}, s{sT}, s{sE0}")
E(f"s_mov_b32 s{SE+2}, {1<<20}\ns_mov_b32 s{SE+3}, 0x00020000\ns_mov_b32 s{SK+2}, {1<<28}\ns_mov_b32 s{SK+3}, 0x00020000")
E("s_waitcnt lgkmcnt(0)")
E(f"s_mov_b32 s{SE}, s10\ns_mov_b32 s{SE+1}, s11")
E(f"s_cmp_lt_u32 s{sC}, 2\ns_cbranch_scc0 L_noprobe\ns_cmp_eq_u32 s{sW}, 0\ns_cbranch_scc0 L_probed")
E(f"s_cmp_eq_u32 s{sC}, 0\ns_cselect_b32 s{SK}, s6, s8\ns_cselect_b32 s{SK+1}, s7, s9")
E(f"s_bfe_u32 s{sSIG}, s{sGRP}, 0x10001\ns_lshl_b32 s{sA}, s{sSIG}, 13\ns_add_u32 s{sA}, s{sA}, s{sKV}\ns_lshr_b32 s{sB}, s{sGRP}, 1\ns_lshl_b32 s{sB}, s{sB}, 8")
E(f"s_add_u32 s{sA}, s{sA}, s{sB}\ns_add_u32 s{sA}, s{sA}, 0x70000\ns_xor_b32 s{sB}, s{sA}, 0x2000\ns_mov_b64 exec, 1")
E.raw("  .p2align 6")
E(f"buffer_load_dword v{PL}, off, {srd(SK)}, s{sA} nt\nbuffer_load_dword v{PL+1}, off, {srd(SK)}, s{sB} nt\ns_barrier")
E("s_waitcnt vmcnt(1)\ns_memtime s[100:101]\ns_waitcnt vmcnt(0)\ns_memtime s[92:93]\ns_mov_b64 exec, -1\ns_branch L_noprobe")
E("L_probed:\ns_barrier\nL_noprobe:")
def e_dma(B, ts=range(8)):
    for t in ts:
        if P["noE"]: h.tag[("D", B)] = 0; continue
        pat = P[f"D{B}"]; h.window(int(pat[t % len(pat)]))
        E(f"s_add_u32 m0, s{sM}, {(B & 1) * 32768 + t * 1024}")
        E(f"s_add_u32 s{sA}, s{sT}, {t * 32768 + B * 1024}")
        h.issue(f"buffer_load_dwordx4 v{vD+t}, {srd(SE)}, s{sA} offen {P['epol' if B else 'e0pol']} lds", ("D", B))
def first_touch(which):
    E(f"s_lshl_b32 s{sA}, s2, 12\ns_lshl_b32 s{sB}, s{sW}, 10\ns_add_u32 s{sA}, s{sA}, s{sB}\nv_lshlrev_b32 v{TMP+8}, 4, v{vL}")
    if "E" in which: E(f"buffer_load_dwordx4 {vr(PL+8)}, v{TMP+8}, {srd(SE)}, s{sA} offen")
    if "F" in which: E(f"buffer_load_dwordx4 {vr(PL+12)}, v{TMP+8}, {srd(SF)}, s{sA} offen")
if P["pfM"]:
    build_srd(SF, 12, 1 << 20); first_touch(P["pfM"])
N0 = int(P["D0"][0]) or 8
e_dma(0, range(N0))
E("s_branch L_helper")

E("L_stream:")
vKV, vEA, vSCW, vOW, vWA, vQ = 1, 2, 3, 4, 5, 6
RING, NSLOT = 8, 12
VBA, VBB, WA = 56, 88, 120
TT, TBO, ACK2, TBE, ACK1 = 56, 64, 68, 88, 92
def TB(T): return TBO if T & 1 else TBE
def ACK(u): return ACK2 if u & 1 else ACK1
def QR(u): return 84 if u == 3 else 108 + 4 * u
aE, aV = 0, 0
q = Q()
def win(k):
    T = k >> 3
    if T >= 64 - P["NE"]: return P["XE"]
    if T >= 64 - P["NE1"]: return P["XE1"]
    for part in filter(None, P["XR"].split("/")):
        lo, hi, pat = part.split(",")
        if int(lo) <= k < int(hi): return int(pat[k % len(pat)], 16)
    Tn = min(k + P["XS"], 511) >> 3
    if Tn < 32 and tile(Tn)[1] < 2: return P["XS"]
    if P["XP"]: return int(P["XP"][k % len(P["XP"])], 16)
    return P["X"]
next_load = [0]; based = [0]
def tile_base(T):
    u, b = tile(T)
    if T < 32 and b < 2: base, off = sKV, u * 4194304 + b * 8192
    else: base, off = (sKD if T < 32 else sVD), u * 4194304 + b * 65536
    r = sT2 if T & 1 else sT
    E(f"s_add_u32 s{r}, s{base}, {off}" if off else f"s_mov_b32 s{r}, s{base}")
    based[0] = T + 1
def issue_load():
    n = next_load[0]; next_load[0] += 1
    T, i = n >> 3, n & 7
    if based[0] <= T: tile_base(T)
    r = RING + (n % NSLOT) * 4
    q.issue(f"buffer_load_dwordx4 {vr(r)}, v{vKV}, {srd(SK if T < 32 else SV)}, s{sT2 if T & 1 else sT} offen offset:{i*256} {P['kvpol'].replace('+', ' ')}", ("ld", n))
E(f"v_lshlrev_b32 v{vQ}, 4, v{vJ}\nv_and_b32 v7, 1, v{vG}\nv_lshl_add_u32 v{vKV}, v7, 15, v{vQ}\nv_lshrrev_b32 v2, 1, v{vG}\nv_lshl_add_u32 v{vKV}, v2, 14, v{vKV}")
E(f"s_lshl_b32 s{sA}, s{sW}, 11\ns_add_u32 s{sKD}, s{sKV}, s{sA}\ns_lshr_b32 s{sA}, s{sC}, 2\ns_lshl_b32 s{sA}, s{sA}, 16\ns_add_u32 s{sKV}, s{sKD}, s{sA}")
E(f"s_lshl_b32 s{sB}, s{sHD}, 8")
E(f"s_mov_b32 s{SK+2}, {1<<28}\ns_mov_b32 s{SK+3}, 0x00020000\ns_mov_b32 s{SQ+2}, 32768\ns_mov_b32 s{SQ+3}, 0x00020000")
tile_base(0)
E("s_waitcnt lgkmcnt(0)")
E(f"s_mov_b32 s{SK}, s6\ns_mov_b32 s{SK+1}, s7\ns_mov_b32 s{SQ}, s4\ns_mov_b32 s{SQ+1}, s5")
E(f"s_cmp_lt_u32 s{sC}, 2\ns_cbranch_scc0 L_go\ns_barrier\nL_go:")
for n in range(P["first"]): issue_load()
if P["prio"]: E(f"s_setprio {P['prio']}")
E(f"v_lshlrev_b32 v7, 3, v7\nv_lshl_add_u32 v7, v2, 2, v7\nv_add_u32 v7, s{sW}, v7")
E(f"v_xor_b32 v7, v7, v{vJ}\nv_lshlrev_b32 v7, 4, v7\nv_lshl_add_u32 v{vEA}, v{vJ}, 9, v7")
E(f"s_lshl_b32 s{sA}, s{sW}, 4\ns_add_u32 s{sA}, s{sA}, {L_SC}\nv_lshlrev_b32 v7, 6, v{vJ}\nv_lshl_add_u32 v7, v{vG}, 2, v7\nv_add_u32 v{vSCW}, s{sA}, v7")
E(f"s_lshl_b32 s{sA}, s{sW}, 9\ns_add_u32 s{sA}, s{sA}, {L_OL}\nv_lshlrev_b32 v7, 5, v{vJ}\nv_add_u32 v{vOW}, s{sA}, v7")
E(f"s_lshl_b32 s{sA}, s{sW}, 7\ns_add_u32 s{sA}, s{sA}, {L_WA}\nv_and_b32 v7, 1, v{vJ}\nv_lshlrev_b32 v7, 6, v7\nv_lshl_add_u32 v7, v{vG}, 4, v7\nv_add_u32 v{vWA}, s{sA}, v7")
def q_load(u): q.issue(f"buffer_load_dwordx4 {vr(QR(u))}, v{vQ}, {srd(SQ)}, s{sB} offen offset:{u*512} nt", ("q", u))
q_load(0); q_load(1)
build_srd(SV, 8, 1 << 28)
E(f"s_mov_b32 s{sSELL}, 0x05040100\ns_mov_b32 s{sSELH}, 0x07060302\nv_mov_b32 v7, {L_SG}")

def vbuf(T): return VBB if (T & 1) == 0 else VBA
def v_finish(T, es):
    for e in es:
        c_ = "0" if (T & 7) == 0 else ar(aV + e * 4)
        E(f"v_mfma_f32_16x16x32_bf16 {ar(aV+e*4)}, {vr(WA+(T&1)*4)}, {vr(vbuf(T)+e*4)}, {c_}")
def v_epi(u):
    E("s_mov_b64 exec, 0xffff")
    for e in range(8): E(f"ds_write_b32 v{vOW}, a{aV + e*4 + (u & 1)} offset:{u*2048 + e*4}")
    E("s_mov_b64 exec, -1")
def k_epi(u):
    a = ACK(u)
    for b in range(4): E(f"v_add_f32 v{a+b*4}, v{a+b*4}, v{a+b*4+1}")
    for b in range(4): E(f"v_add_f32 v{a+b*4+2}, v{a+b*4+2}, v{a+b*4+3}")
    for b in range(4): E(f"v_add_f32 v{a+b*4}, v{a+b*4}, v{a+b*4+2}")
    for b in range(4): E(f"ds_write_b32 v{vSCW}, v{a+b*4} offset:{(u & 1)*4096 + b*1024}")
last_tile = {tile(T)[0]: T for T in range(32)}
QL = P["first"]
lds_pending = False
for k in range(512):
    T, i = k >> 3, k & 7
    if i == 0: E(f"; ---- tile {T}")
    if P["stamps"] and not P["fine"] and i == 0 and T % 8 == 0 and T: E(f"s_memrealtime s[{70+2*(T//8-1)}:{71+2*(T//8-1)}]")
    q.wait(("ld", k))
    if P["fine"]:
        fs = [int(x) for x in P["fine"].split(",")]
        if k in fs: E(f"s_memrealtime s[{70+2*fs.index(k)}:{71+2*fs.index(k)}]")
    while next_load[0] < min(512, k + win(k) + 1): issue_load()
    assert not (k <= QL and next_load[0] > NSLOT), "ring slot reused before its row was consumed"
    oldest = next_load[0] - 1 - NSLOT
    assert k <= QL or oldest + (0 if oldest < 256 else (oldest & 1) ^ 1) < k
    if k in BARS: E("s_waitcnt lgkmcnt(0)\ns_barrier"); lds_pending = False
    elif lds_pending and (i == 0 or k in (SBAR[0] + 1, 510)): E("s_waitcnt lgkmcnt(0)"); lds_pending = False
    if k == SBAR[0]: E(f"ds_read_b64 v[{WA}:{WA+1}], v7"); lds_pending = True
    if k == SBAR[0] + 1:
        assert based[0] <= 4
        E(f"v_readfirstlane_b32 s{sA}, v{WA+1}\ns_add_u32 s{sVD}, s{sKD}, s{sA}\nv_readfirstlane_b32 s{sA}, v{WA}\ns_add_u32 s{sKD}, s{sKD}, s{sA}")
    if k == QL: q.wait(("q", 1))
    if k == 128: q.wait(("q", 3))
    if i == 0 and 0 < T <= 32:
        for m in range(4): E(f"v_cvt_pk_bf16_f32 v{TB(T-1)+m}, v{TT+2*m}, v{TT+2*m+1}")
    if T > 32 and i in (0, 2, 4, 6): v_finish(T - 1, (i, i + 1))
    if T < 32:
        for kk in ([] if k < QL else range(k + 1) if k == QL else [k]):
            for c4 in range(4):
                E(f"v_dot2_f32_bf16 v{TT+(kk&7)}, v{RING+(kk%NSLOT)*4+c4}, v{QR(tile(T)[0])+c4}, {'0' if c4 == 0 else 'v%d' % (TT+(kk&7))}")
    if i == 0 and 0 < T <= 32:
        for Tf in ([] if T - 1 in HELD else [T - 2, T - 1] if T - 2 in HELD else [T - 1]):
            u, b_ = tile(Tf)
            if Tf < 16: assert EBAR[b_ >> 1] + 4 <= k
            for blk in range(4):
                c_ = "0" if b_ == 0 else vr(ACK(u) + blk * 4)
                E(f"v_mfma_f32_16x16x32_bf16 {vr(ACK(u)+blk*4)}, {vr(TB(Tf))}, {ar(aE+(b_*4+blk)*4)}, {c_}")
    for u in range(4):
        if k == 8 * (last_tile[u] + 1) + 1: k_epi(u)
    if T >= 32 and i & 1:
        r, rp = RING + (k % NSLOT) * 4, RING + ((k - 1) % NSLOT) * 4
        for c4 in range(4):
            E(f"v_perm_b32 v{vbuf(T)+(2*c4)*4+(i>>1)}, v{r+c4}, v{rp+c4}, s{sSELL}")
            E(f"v_perm_b32 v{vbuf(T)+(2*c4+1)*4+(i>>1)}, v{r+c4}, v{rp+c4}, s{sSELH}")
    if T in (40, 48, 56) and i == 7: v_epi((T - 40) >> 3)
    for d in range(4):
        if k - d in EBAR:
            B = EBAR.index(k - d); b0 = d >> 1; lds_pending = True
            for blk in (2 * (d & 1), 2 * (d & 1) + 1):
                E(f"ds_read_b128 {ar(aE + ((2*B+b0)*4+blk)*4)}, v{vEA} offset:{(B & 1)*32768 + blk*8192 + b0*256}")
    if T >= 32 and i == 3:
        E(f"ds_read_b128 {vr(WA+(T&1)*4)}, v{vWA} offset:{((T-32)>>4)*4096 + (T&7)*512}"); lds_pending = True
    if k in (104, 106): q_load(2 + (k - 104) // 2)
    if (next_load[0] & 7) >= 4 and based[0] == (next_load[0] >> 3) + 1 and based[0] < 64 and (based[0] != 4 or k > SBAR[0]): tile_base(based[0])
if P["stamps"]: E("s_memrealtime s[84:85]")
v_finish(63, range(8))
v_epi(3)
if P["stamps"]:
    E(f"s_cmp_eq_u32 s{sW}, 0\ns_cbranch_scc0 L_nost\ns_waitcnt lgkmcnt(0)")
    for m, sr in enumerate((70, 72, 74, 76, 78, 80, 82, 84)): E(f"v_mov_b32 v{8+m}, s{sr}")
    E("v_mov_b32 v7, 0\nds_write_b128 v7, v[8:11]\nds_write_b128 v7, v[12:15] offset:16\nL_nost:")
E("s_waitcnt lgkmcnt(0)\ns_barrier\ns_endpgm")

E("L_helper:")
build_srd(SD, 16, 256)
E(f"s_lshl_b32 s{sA}, s{sW}, 3\ns_or_b32 s{sA}, s{sA}, s{sC}\ns_cmp_lt_u32 s{sA}, 2\ns_cbranch_scc0 L_voted\ns_waitcnt lgkmcnt(0)")
E(f"s_sub_u32 s92, s92, s100\ns_cmp_gt_u32 s92, {P['thr']}\ns_cselect_b32 s{sA}, 0, 1\ns_xor_b32 s{sA}, s{sA}, s{sSIG}\ns_xor_b32 s{sA}, s{sA}, s{sGRP}\ns_and_b32 s{sA}, s{sA}, 1")
E(f"s_lshl_b32 s{sB}, s{sC}, 3\ns_add_u32 s{sB}, s{sB}, 8\ns_lshl_b32 s{sA}, s{sA}, s{sB}\ns_add_u32 s{sA}, s{sA}, 1\nv_mov_b32 v{PL}, s{sA}\ns_mov_b64 exec, 1")
E(f"buffer_atomic_add v{PL}, off, {srd(SD)}, 0 sc1\ns_mov_b64 exec, -1\nL_voted:")
e_dma(0, range(N0, 8))
E(f"v_and_b32 v{TMP}, 1, v{vG}\nv_mul_u32_u24 v{TMP}, 448, v{TMP}")
if P["fullline"]:
    E(f"v_lshrrev_b32 v{TMP+1}, 5, v{vL}\nv_and_b32 v{TMP+2}, 31, v{vL}\nv_lshlrev_b32 v{TMP+2}, 4, v{TMP+2}\nv_lshl_add_u32 v{TMP+2}, v{TMP+1}, 14, v{TMP+2}")
    for t in range(8): E(f"v_mov_b32 v{vD+t}, v{TMP+2}")
    E(f"v_mov_b32 v{TMP}, 0")
for t in range(8): E(f"v_add_u32 v{vD+t}, v{vD+t}, v{TMP}")
build_srd(SF, 12, 1 << 20); build_srd(SO, 14, 32768); build_srd(SWS, 18, 1 << 30)
ce = struct.unpack("<I", struct.pack("<f", (128 ** -0.5) * math.log2(math.e)))[0]
E(f"s_mov_b32 s{sCE}, {ce:#x}\ns_lshl_b32 s{sSC}, s{sGRP}, 11")
E(f"s_lshl_b32 s{sOP}, s{sGRP}, 14\ns_add_u32 s{sOP}, s{sOP}, {OOFF}")
E(f"s_lshl_b32 s{sA}, s{sW}, 12\ns_add_u32 s{sO}, s{sOP}, s{sA}\ns_lshl_b32 s{sA}, s{sC}, 8\ns_add_u32 s{sO}, s{sO}, s{sA}")
E(f"s_lshl_b32 s{sA}, s{sC}, 11\ns_add_u32 s{sOP}, s{sOP}, s{sA}")
E(f"s_and_b32 s{sA}, s{sC}, 6\ns_add_u32 s{sOUT}, s{sHD}, s{sA}\ns_lshl_b32 s{sOUT}, s{sOUT}, 8\ns_and_b32 s{sA}, s{sC}, 1\ns_lshl_b32 s{sA}, s{sA}, 7\ns_add_u32 s{sOUT}, s{sOUT}, s{sA}")
E(f"s_lshl_b32 s{sFS}, s{sW}, 14\ns_cmp_ge_u32 s{sW}, 2\ns_cselect_b32 s{sA}, {L_F2 - 32768}, 0\ns_add_u32 s{sFS}, s{sFS}, s{sA}\ns_mov_b32 s{sA}, s{sFS}")
E(f"v_lshrrev_b32 v{TMP}, 2, v{vJ}\nv_lshl_add_u32 v{TMP}, v{vG}, 3, v{TMP}\nv_and_b32 v{TMP+1}, 1, v{vJ}\nv_lshlrev_b32 v{TMP+1}, 3, v{TMP+1}")
E(f"v_bfe_u32 v{TMP+2}, v{vJ}, 1, 1\nv_lshl_add_u32 v{TMP+1}, v{TMP+2}, 2, v{TMP+1}")
for hh in range(2):
    if hh: E(f"v_add_u32 v{TMP}, 4, v{TMP}")
    E(f"v_and_b32 v{TMP+2}, 15, v{TMP}\nv_xor_b32 v{TMP+2}, v{TMP+2}, v{TMP+1}\nv_lshlrev_b32 v{TMP+2}, 4, v{TMP+2}\nv_lshl_add_u32 v{TMP+2}, v{TMP}, 9, v{TMP+2}")
    E(f"v_add_u32 v{vFA+hh}, s{sA}, v{TMP+2}")
E(f"v_and_b32 v{TMP}, 1, v{vJ}\nv_lshlrev_b32 v{TMP+1}, 20, v{TMP}\nv_lshrrev_b32 v{TMP+2}, 1, v{vJ}\nv_lshl_add_u32 v{TMP+1}, v{TMP+2}, 8, v{TMP+1}\nv_lshl_add_u32 v{vSC}, v{vG}, 5, v{TMP+1}")
E(f"s_mov_b32 s{sSELA}, 0x0c0c0400\ns_mov_b32 s{sSELB}, 0x04000c0c\ns_mov_b32 s{sMASK}, 0xff")
E(f"s_lshl_b32 s{sA}, s{sW}, 10\ns_add_u32 s{sA}, s{sA}, {L_WA}\nv_lshlrev_b32 v{TMP}, 6, v{TMP}\nv_lshl_add_u32 v{TMP}, v{vG}, 4, v{TMP}\nv_add_u32 v{vWW}, s{sA}, v{TMP}")
E(f"v_lshlrev_b32 v{TMP}, 6, v{vL}\nv_add_u32 v{vSCR}, {L_SC}, v{TMP}\nv_lshlrev_b32 v{vL4}, 2, v{vL}")
E(f"v_lshlrev_b32 v{TMP}, 4, v{vL}\nv_add_u32 v{vPB}, {L_PB}, v{TMP}")
E(f"v_add_u32 v{vBW}, {L_PB}, v{vL4}\nv_and_b32 v{TMP}, 31, v{vL}\nv_lshlrev_b32 v{TMP}, 4, v{TMP}\nv_add_u32 v{vBR}, {L_PB}, v{TMP}")
E(f"s_lshl_b32 s{sA}, s{sW}, 11\ns_add_u32 s{sA}, s{sA}, {L_OL}\nv_add_u32 v{vOR}, s{sA}, v{TMP}")
E(f"v_and_b32 v{TMP}, 1, v{vG}\nv_lshlrev_b32 v{TMP+1}, 20, v{TMP}\nv_lshl_add_u32 v{vBS}, v{vJ}, 4, v{TMP+1}")
E(f"v_lshlrev_b32 v{TMP+1}, 11, v{TMP}\nv_lshl_add_u32 v{vOS}, v{vJ}, 4, v{TMP+1}")
E(f"v_lshlrev_b32 v{TMP+1}, 4, v{vJ}\nv_lshl_add_u32 v{vOP}, v{vG}, 8, v{TMP+1}\nv_lshlrev_b32 v{vOUT}, 3, v{vJ}")
E(f"v_lshl_add_u32 v{vOUT}, v{TMP}, 2, v{vOUT}\nv_lshrrev_b32 v{TMP}, 1, v{vG}\nv_lshl_add_u32 v{vOUT}, v{TMP}, 1, v{vOUT}")
def touch(sr, row0, col, nw):
    E(f"s_cmp_lt_u32 s{sW}, {nw}\ns_cbranch_scc0 L_t{sr}_{row0}_{col}")
    if nw == 2: E(f"s_lshl_b32 s{sA}, s{sGRP}, 1\ns_add_u32 s{sA}, s{sA}, s{sW}\ns_lshl_b32 s{sA}, s{sA}, 14")
    else: E(f"s_lshl_b32 s{sA}, s{sGRP}, 14\ns_lshl_b32 s{sB}, s{sW}, 10\ns_add_u32 s{sA}, s{sA}, s{sB}")
    E(f"s_and_b32 s{sB}, s{sC}, 3\ns_lshl_b32 s{sB}, s{sB}, 12\ns_add_u32 s{sA}, s{sA}, s{sB}\ns_add_u32 s{sA}, s{sA}, {row0*16384 + col}\nv_lshlrev_b32 v{TMP+8}, 4, v{vL}")
    E(f"buffer_load_dwordx4 {vr(PL+8)}, v{TMP+8}, {srd(sr)}, s{sA} offen {P['tpol']}\nL_t{sr}_{row0}_{col}:")
def split():
    E(f"s_mov_b32 s{sSPIN}, {P['spin']}\nL_tally:")
    E(f"buffer_load_dword v{vRDY}, off, {srd(SD)}, 0 sc1\ns_waitcnt vmcnt(0)\nv_readfirstlane_b32 s{sSIG}, v{vRDY}")
    E(f"s_and_b32 s{sA}, s{sSIG}, 0xff\ns_cmp_eq_u32 s{sA}, 64\ns_cbranch_scc1 L_tallied\ns_sleep 16\ns_sub_u32 s{sSPIN}, s{sSPIN}, 1\ns_cbranch_scc0 L_tally\nL_tallied:")
    h.done = h.n
    if P["force"] >= 0: E(f"s_mov_b32 s{sSIG}, {(P['force'] & 1) * 0x2000 + (P['force'] >> 1) * 0x200000}")
    E(f"s_lshr_b32 s{sB}, s{sC}, 2\ns_xor_b32 s{sB}, s{sB}, s{sGRP}\ns_and_b32 s{sB}, s{sB}, 1")
    for n, dst in ((0, sKD), (1, sVD)):
        E(f"s_bfe_u32 s{sA}, s{sSIG}, {0x80000 + 8 + 8*n:#x}\ns_cmp_gt_u32 s{sA}, 16\ns_cselect_b32 s{sA}, 1, 0\ns_xor_b32 s{dst}, s{sA}, s{sB}")
        E(f"s_lshl_b32 s{sA}, s{dst}, 13\nv_mov_b32 v{TMP+n}, s{sA}")
    E(f"v_mov_b32 v{TMP+2}, {L_SG}\nds_write_b64 v{TMP+2}, v[{TMP}:{TMP+1}]")
    sh = 9 if P["fullline"] else 6
    E(f"s_lshl_b32 s{sA}, s{sKD}, {sh}\ns_add_u32 s{sT}, s{sE0}, s{sA}\ns_lshl_b32 s{sA}, s{sVD}, {sh}\ns_add_u32 s{sF0}, s{sF0}, s{sA}\ns_lshl_b32 s{sFB}, s{sW}, 10\ns_add_u32 s{sFB}, s{sFB}, s{sF0}\ns_waitcnt lgkmcnt(0)")
NB = P["NB"] if P["early"] else 0
def nonce_load():
    E(f"s_lshl_b32 s{sB}, s{sGRP}, 14\ns_add_u32 s{sB}, s{sB}, {OOFF}")
    h.issue(f"buffer_load_dwordx4 {vr(PL)}, off, {srd(SWS)}, s{sB} sc1 nt", "old")
def nonce_make():
    h.wait("old")
    E(f"v_perm_b32 v{TMP}, v{PL+1}, v{PL}, s{sSELA}\nv_perm_b32 v{TMP+1}, v{PL+3}, v{PL+2}, s{sSELB}\nv_or_b32 v{TMP}, v{TMP}, v{TMP+1}")
    E(f"v_readfirstlane_b32 s{sA}, v{TMP}")
    E(f"s_mul_i32 s{sNON}, s{sA}, 0x9e3779b1\ns_add_u32 s{sNON}, s{sNON}, 0x7f4a7c15\ns_lshr_b32 s{sB}, s{sNON}, 15\ns_xor_b32 s{sNON}, s{sNON}, s{sB}")
    E(f"s_xor_b32 s{sB}, s{sNON}, 2\ns_cmp_eq_u32 s{sNON}, s{sA}\ns_cselect_b32 s{sNON}, s{sB}, s{sNON}")
    E(f"v_mov_b32 v{vRDY}, s{sNON}")
    E(f"v_and_b32 v{TMP}, 3, v{vL}\nv_lshlrev_b32 v{TMP}, 3, v{TMP}\nv_lshrrev_b32 v{vTG1}, v{TMP}, v{vRDY}")
    for m in range(4): E(f"v_lshrrev_b32 v{vTG+m}, {8*m}, v{vRDY}")
def tag_check(r, n):
    for m in range(n):
        E(f"v_perm_b32 v{TMP+2*m}, v{r+4*m+1}, v{r+4*m}, s{sSELA}\nv_perm_b32 v{TMP+2*m+1}, v{r+4*m+3}, v{r+4*m+2}, s{sSELB}")
    for m in range(n): E(f"v_or_b32 v{TMP+2*m}, v{TMP+2*m}, v{TMP+2*m+1}")
    for m in range(n): E(f"v_xor_b32 v{TMP+2*m}, s{sNON}, v{TMP+2*m}")
    for m in range(1, n): E(f"v_or_b32 v{TMP}, v{TMP}, v{TMP+2*m}")
    E(f"v_cmp_ne_u32 vcc, 0, v{TMP}")
def untag(r, n):
    for m in range(n): E(f"v_and_b32 v{r+m}, 0xffffff00, v{r+m}")
def publish(ev):
    E(f"s_cmp_eq_u32 s{sW}, 3\ns_cbranch_scc0 L_pub{ev}")
    for n in range(2):
        for m in range(4): E(f"ds_read_b128 {vr(S+m*4)}, v{vSCR} offset:{n*4096 + m*16}")
        E("s_waitcnt lgkmcnt(0)")
        for st in (8, 4, 2):
            for m in range(st): E(f"v_add_f32 v{S+m}, v{S+m}, v{S+m+st}")
        E(f"v_add_f32 v{WT+n}, v{S}, v{S+1}\nv_bfi_b32 v{WT+n}, s{sMASK}, v{vTG1}, v{WT+n}")
    E(f"ds_write_b32 v{vBW}, v{WT}\nds_write_b32 v{vBW}, v{WT+1} offset:256\ns_waitcnt lgkmcnt(0)\nds_read_b128 {vr(S)}, v{vBR}")
    E(f"s_lshl_b32 s{sA}, s{sC}, 8\ns_add_u32 s{sA}, s{sA}, s{sSC}\ns_add_u32 s{sA}, s{sA}, {ev * 65536}\ns_waitcnt lgkmcnt(0)\ns_mov_b32 exec_hi, 0")
    if "s" not in P["nosync"]: E(f"buffer_store_dwordx4 {vr(S)}, v{vBS}, {srd(SWS)}, s{sA} offen sc1")
    E(f"s_mov_b64 exec, -1\nL_pub{ev}:")
def f_loads(ks, ts):
    for t in ts:
        if P["noF"]: continue
        pat = P[f"F{ks}"]; h.window(int(pat[t % len(pat)]))
        E(f"s_add_u32 m0, s{sFS}, {t*1024}\ns_add_u32 s{sA}, s{sFB}, {ks*524288 + t*32768}")
        h.issue(f"buffer_load_dwordx4 v{vD+(t&7)}, {srd(SF)}, s{sA} offen {P['fpol']} lds")
def f_reads(ks):
    h.drain()
    for w_ in range(4):
        for hh in range(2): E(f"v_xor_b32 v{TMP+hh}, {w_*16}, v{vFA+hh}")
        for bb in range(2):
            for hb in range(2):
                for hh in range(2):
                    E(f"ds_read_b64_tr_b16 {ar(aFT + (((bb*4+w_)*2+hb)*2+ks)*4 + hh*2, 2)}, v{TMP+hh} offset:{bb*256 + hb*8}")
        E("s_waitcnt lgkmcnt(0)")
def xg(op, r):
    for sw in ("v_permlane32_swap_b32", "v_permlane16_swap_b32"):
        E(f"v_mov_b32 v{TMP+1}, v{r}\n{sw} v{TMP+1}, v{r}\n{op} v{r}, v{TMP+1}, v{r}")
def softmax(ev):
    E(f"s_cmp_eq_u32 s{sW}, 0\ns_cbranch_scc0 L_sm{ev}")
    if "l" not in P["nosync"]:
        E(f"s_add_u32 s{sA}, s{sSC}, {ev*65536}\ns_mov_b32 s{sSPIN}, {P['spin']}\nL_sc{ev}:")
        for m, o in enumerate((0, 16, 128, 144)): E(f"buffer_load_dwordx4 {vr(S+m*4)}, v{vSC}, {srd(SWS)}, s{sA} offen offset:{o} sc1")
        E("s_waitcnt vmcnt(0)")
        tag_check(S, 4)
        E(f"s_cbranch_vccz L_sc_ok{ev}\ns_sleep 8\ns_sub_u32 s{sSPIN}, s{sSPIN}, 1\ns_cbranch_scc0 L_sc{ev}\nL_sc_ok{ev}:")
    untag(S, 16)
    for ctl in ("quad_perm:[2,3,0,1]", "row_ror:4", "row_ror:8"):
        for m in range(16): E(f"v_add_f32_dpp v{S+m}, v{S+m}, v{S+m} {ctl} row_mask:0xf bank_mask:0xf")
    maxtree("v_max3_f32", TMP + 2, range(S, S + 16)); xg("v_max_f32", TMP + 2)
    E(f"v_mul_f32 v{TMP+2}, s{sCE}, v{TMP+2}")
    for m in range(16): E(f"v_fma_f32 v{S+m}, v{S+m}, s{sCE}, -v{TMP+2}")
    for m in range(16): E(f"v_exp_f32 v{S+m}, v{S+m}")
    for m in range(4): E(f"v_add_f32 v{TMP+4+m}, v{S+m}, v{S+m+4}")
    for m in range(4): E(f"v_add_f32 v{TMP+8+m}, v{S+m+8}, v{S+m+12}")
    for m in range(4): E(f"v_add_f32 v{TMP+4+m}, v{TMP+4+m}, v{TMP+8+m}")
    E(f"v_add_f32 v{TMP+4}, v{TMP+4}, v{TMP+5}\nv_add_f32 v{TMP+6}, v{TMP+6}, v{TMP+7}\nv_add_f32 v{TMP+3}, v{TMP+4}, v{TMP+6}")
    xg("v_add_f32", TMP + 3)
    E(f"v_rcp_f32 v{TMP+3}, v{TMP+3}")
    for m in range(16): E(f"v_mul_f32 v{S+m}, v{S+m}, v{TMP+3}")
    for m in range(8): E(f"v_cvt_pk_bf16_f32 v{PB+m}, v{S+2*m}, v{S+2*m+1}")
    E(f"ds_write_b128 v{vPB}, {vr(PB)}\nds_write_b128 v{vPB}, {vr(PB+4)} offset:1024\ns_waitcnt lgkmcnt(0)\nL_sm{ev}:")
def weights(ev):
    E(f"ds_read_b128 {vr(PB)}, v{vPB}\nds_read_b128 {vr(PB+4)}, v{vPB} offset:1024")
    E("s_mov_b32 s100, 0x00030003\ns_mov_b32 s101, 0x00030003\ns_waitcnt lgkmcnt(0)")
    for bb in range(2):
        for w_ in range(4):
            for ks in range(2):
                for hb in range(2):
                    c_ = "0" if ks == 0 else vr(DD + hb * 4)
                    E(f"v_mfma_f32_16x16x32_bf16 {vr(DD+hb*4)}, {ar(aFT + (((bb*4+w_)*2+hb)*2+ks)*4)}, {vr(PB+ks*4)}, {c_}")
            for kk in range(4): E(f"v_cvt_pk_bf16_f32 v{WT+kk}, v{DD+2*kk}, v{DD+2*kk+1}")
            E(f"s_mov_b64 exec, s[100:101]\nds_write_b128 v{vWW}, {vr(WT)} offset:{ev*4096 + bb*512 + w_*128}\ns_mov_b64 exec, -1")
    E("s_waitcnt lgkmcnt(0)")
for k in BARS:
    if k in EBAR:
        B = EBAR.index(k)
        h.wait(("D", B))
        E("s_barrier")
        if B == 0 and P["tE"]: touch(SE, 0, 1024, 2)
        if B == P["pfLb"] and P["pfL"]: first_touch(P["pfL"])
        if B == 0: split()
        if B == 1 and P["tE"]: touch(SE, 0, 3072, 2)
        if B == 2 and P["tF"]: touch(SF, 0, 0, 4)
        if B == 1: nonce_load()
        if B == 2: nonce_make()
        if 0 < B < 3: e_dma(B + 1)
        if B == 3: f_loads(0, range(NB))
    elif k in SBAR:
        E("s_barrier"); e_dma(1)
        if P["tE"]: touch(SE, 0, 2048, 2)
    elif k in UBAR:
        E("s_barrier")
        publish(UBAR.index(k))
        if k == UBAR[0]:
            f_loads(0, range(NB, 12))
            if P["tF"]: touch(SF, 32, 0, 4)
            f_loads(0, range(12, 16)); f_reads(0)
            if P["smpos"]: softmax(0)
            f_loads(1, range(16)); f_reads(1)
            if not P["smpos"]: softmax(0)
    elif k in PBAR:
        E("s_barrier"); weights(PBAR.index(k))
    elif k == XBAR[0]:
        E("s_barrier"); softmax(1)
    else:
        E("s_barrier")
E("s_barrier")
for w_ in range(4): E(f"ds_read_b128 {vr(S+w_*4)}, v{vOR} offset:{w_*512}")
E("s_mov_b32 exec_hi, 0\ns_waitcnt lgkmcnt(2)")
for m in range(4): E(f"v_add_f32 v{S+m}, v{S+m}, v{S+4+m}")
E("s_waitcnt lgkmcnt(0)")
for m in range(4): E(f"v_add_f32 v{S+8+m}, v{S+8+m}, v{S+12+m}")
for m in range(4): E(f"v_add_f32 v{S+m}, v{S+m}, v{S+8+m}")
for m in range(4): E(f"v_bfi_b32 v{S+m}, s{sMASK}, v{vTG+m}, v{S+m}")
E(f"buffer_store_dwordx4 {vr(S)}, v{vOS}, {srd(SWS)}, s{sO} offen sc1\ns_mov_b64 exec, -1")
E(f"s_cmp_eq_u32 s{sW}, 0\ns_cbranch_scc0 L_done")
if P["stamps"]: E("s_memrealtime s[86:87]")
E(f"s_mov_b32 s{sSPIN}, {P['spin']}\nL_poll:")
E(f"buffer_load_dwordx4 {vr(PL)}, v{vOP}, {srd(SWS)}, s{sOP} offen sc1")
E(f"buffer_load_dwordx4 {vr(PL+4)}, v{vOP}, {srd(SWS)}, s{sOP} offen offset:1024 sc1")
E("s_waitcnt vmcnt(0)")
tag_check(PL, 2)
E(f"s_sub_u32 s{sSPIN}, s{sSPIN}, 1\ns_cbranch_scc1 L_got\ns_cbranch_vccnz L_poll\nL_got:")
untag(PL, 8)
for m in range(4): E(f"v_add_f32 v{PL+m}, v{PL+m}, v{PL+4+m}")
E(f"v_permlane32_swap_b32 v{PL}, v{PL+1}\nv_permlane32_swap_b32 v{PL+2}, v{PL+3}")
E(f"v_add_f32 v{PL}, v{PL}, v{PL+1}\nv_add_f32 v{PL+2}, v{PL+2}, v{PL+3}")
E(f"v_permlane16_swap_b32 v{PL}, v{PL+2}\nv_add_f32 v{PL}, v{PL}, v{PL+2}\nv_cvt_pk_bf16_f32 v{PL+4}, v{PL}, v{PL}")
if P["fixt"]:
    E(f"L_fix:\ns_memrealtime s[92:93]\ns_waitcnt lgkmcnt(0)\ns_sub_u32 s92, s92, s90\ns_cmp_lt_u32 s92, {P['fixt']}\ns_cbranch_scc1 L_fix")
E(f"buffer_store_short v{PL+4}, v{vOUT}, {srd(SO)}, s{sOUT} offen")
if P["stamps"]:
    E("s_waitcnt vmcnt(0)\ns_memrealtime s[92:93]\ns_getreg_b32 s72, hwreg(HW_REG_XCC_ID)")
    E(f"v_mov_b32 v{TMP}, 0\nds_read_b128 v[56:59], v{TMP}\nds_read_b128 v[60:63], v{TMP} offset:16\ns_waitcnt lgkmcnt(0)")
    E("s_sub_u32 s86, s86, s90")
    for m in range(8): E(f"v_subrev_u32 v{56+m}, s90, v{56+m}")
    for m, sr in enumerate((90, 91, 92, 93, 72, 84, 86, sSIG)): E(f"v_mov_b32 v{48+m}, s{sr}")
    E("v_mov_b32 v53, v63")
    E(f"s_lshl_b32 s{sA}, s2, 6\ns_add_u32 s{sA}, s{sA}, 0x20000000\ns_mov_b64 exec, 1")
    for m in range(4): E(f"buffer_store_dwordx4 {vr(48+m*4)}, off, {srd(SWS)}, s{sA} offset:{m*16}")
E("L_done:\ns_endpgm")
E.raw('.section .rodata,"a"\n.p2align 6')
E.raw(f""".amdhsa_kernel {NAME}
  .amdhsa_next_free_vgpr 256
  .amdhsa_next_free_sgpr 102
  .amdhsa_accum_offset 128
  .amdhsa_group_segment_fixed_size 0
  .amdhsa_float_denorm_mode_32 3
  .amdhsa_kernarg_size 64
  .amdhsa_user_sgpr_count 2
  .amdhsa_user_sgpr_kernarg_segment_ptr 1
  .amdhsa_system_sgpr_workgroup_id_x 1
.end_amdhsa_kernel""")
open(out, "w").write(E.text())
print(out, "instructions", E.count, "auto nops", E.nops, "held", HELD, file=sys.stderr)
```

```python
import sys, struct, math
from emit import Emitter

P = dict(X=5, XE=10, NE=4, XS=5, XR="", first=5, stamps=0, fine="", spin=1 << 20, prio=1,
         D0="3", D1="2", D2="12", D3="12", F0="12", F1="12", NB=3, early=1, smpos=1, PB0=246, PB1=352, SM1=320, SB=20, EB="12,44,76,108", noE=0, noF=0, nosync="",
         jit=0, force=-1, thr=64, fixt=0, fullline=0, kvpol="nt", efpol="", tE=0, tF=0, tpol="nt", pfM="EF", pfL="", pfLb=1, e0pol="", epol="", fpol="", XP="5554", XE1=7, NE1=0)
out = sys.argv[1]
for a in sys.argv[2:]:
    k, v = a.split("="); P[k] = int(v, 0) if isinstance(P[k], int) else v
NAME = "standalone__low_rank_proj_linformer__decode_kernel"
E = Emitter()

def srd(n): return f"s[{n}:{n+3}]"
def vr(n, k=4): return f"v[{n}:{n+k-1}]"
def ar(n, k=4): return f"a[{n}:{n+k-1}]"
SK, SV, SE, SF, SQ, SO, SD, SWS = 20, 24, 28, 32, 36, 40, 44, 48
sW, sGRP, sC, sKV, sT, sA, sB, sSELL, sSELH, sCE, sE0, sM, sSC, sO, sOP, sOUT, sSPIN, sT2 = 3, *range(52, 69)
sKD, sVD, sHD, sFS, sFB = 69, 88, 89, 70, 71
sNON, sSELA, sSELB, sMASK, sSIG, sF0 = 94, 95, 96, 97, 98, 99
HB = 0x100000; OOFF = 0x40000
L_SC = 65536; L_OL = L_SC + 8192; L_WA = L_OL + 8192; L_PB = L_WA + 8192; L_SG = L_PB + 2048; L_F2 = L_SG + 1024; LDS_BYTES = L_F2 + 32768

class Q:
    def __init__(s): s.n = 0; s.done = 0; s.tag = {}
    def issue(s, text, tag=None):
        E(text); s.n += 1
        if tag is not None: s.tag[tag] = s.n
    def wait(s, tag):
        idx = s.tag[tag]
        if idx <= s.done: return
        assert s.n - idx <= 63
        E(f"s_waitcnt vmcnt({s.n - idx})"); s.done = idx
    def window(s, w):
        if w and s.n - s.done >= w: E(f"s_waitcnt vmcnt({w-1})"); s.done = s.n - (w - 1)
    def drain(s): E("s_waitcnt vmcnt(0)"); s.done = s.n
def build_srd(n, lo, size):
    E(f"s_mov_b32 s{n}, s{lo}\ns_mov_b32 s{n+1}, s{lo+1}\ns_mov_b32 s{n+2}, {size}\ns_mov_b32 s{n+3}, 0x00020000")
def maxtree(op, dst, regsl):
    r = list(regsl)
    E(f"{op} v{dst}, v{r[0]}, v{r[1]}, v{r[2]}"); r = r[3:]
    while len(r) >= 2: E(f"{op} v{dst}, v{dst}, v{r[0]}, v{r[1]}"); r = r[2:]
    if r: E(f"{op} v{dst}, v{dst}, v{r[0]}, v{r[0]}")

def tile(T):
    if T < 32: return (T >> 4) * 2 + ((T >> 1) & 1), ((T >> 2) & 3) * 2 + (T & 1)
    return (T >> 3) & 3, T & 7

EBAR = [int(x) for x in P["EB"].split(",")]
SBAR = [P["SB"]]
UBAR = [130, 258]
PBAR = [P["PB0"], P["PB1"]]
XBAR = [P["SM1"], 384]
BARS = sorted(EBAR + SBAR + UBAR + PBAR + XBAR)
HELD = [T for T in range(0, 16, 4) if EBAR[T >> 2] + 4 > 8 * (T + 1)]

E.raw(f"; @launch grid=(256,1,1) block=(512,1,1) lds={LDS_BYTES}")
E.raw('.amdgcn_target "amdgcn-amd-amdhsa--gfx950"\n.text')
E.raw(f".globl {NAME}\n.p2align 8\n.type {NAME},@function\n{NAME}:")
E("s_load_dwordx16 s[4:19], s[0:1], 0")
if P["stamps"] or P["fixt"]: E("s_memrealtime s[90:91]")
E("s_cmp_ge_u32 s2, 256\ns_cbranch_scc1 L_done")
vL, vJ, vG = 0, 126, 127
E(f"v_lshrrev_b32 v1, 6, v0\nv_and_b32 v{vL}, 63, v0")
E(f"v_readfirstlane_b32 s{sW}, v1")
E(f"v_and_b32 v{vJ}, 15, v{vL}\nv_lshrrev_b32 v{vG}, 4, v{vL}")
E(f"s_lshr_b32 s{sGRP}, s2, 3\ns_and_b32 s{sC}, s2, 7")
E(f"s_lshr_b32 s{sHD}, s{sGRP}, 1\ns_lshl_b32 s{sHD}, s{sHD}, 3\ns_and_b32 s{sA}, s{sGRP}, 1\ns_add_u32 s{sHD}, s{sHD}, s{sA}")
E(f"s_lshl_b32 s{sKV}, s{sHD}, 21\ns_and_b32 s{sB}, s{sC}, 3\ns_lshl_b32 s{sA}, s{sB}, 19\ns_add_u32 s{sKV}, s{sKV}, s{sA}")
if P["jit"]:
    E(f"s_mul_i32 s{sA}, s2, 37\ns_mul_i32 s{sT}, s{sW}, {P['jit'] & 1}\ns_add_u32 s{sA}, s{sA}, s{sT}\ns_lshr_b32 s{sA}, s{sA}, 2\ns_and_b32 s{sA}, s{sA}, 15\ns_cmp_lt_u32 s{sA}, 12\ns_cbranch_scc1 L_nojit")
    E(f"s_sub_u32 s{sA}, s{sA}, 11\ns_mul_i32 s{sA}, s{sA}, {P['jit']}\nL_jit:\ns_sleep 64\ns_sub_u32 s{sA}, s{sA}, 1\ns_cmp_lg_u32 s{sA}, 0\ns_cbranch_scc1 L_jit\nL_nojit:")
E(f"s_cmp_ge_u32 s{sW}, 4\ns_cbranch_scc0 L_stream")

vD, vFA, vSC, vSCR, vL4, vOR, vOS, vOP, vOUT, vRDY, vWW, vTG1, vPB, vBW, vBR, vBS = 4, 12, *range(16, 30)
vTG = 112
S, PB, DD, WT, TMP, PL = 32, 48, 56, 64, 68, 80
aFT = 0
h = Q()
E(f"s_sub_u32 s{sW}, s{sW}, 4")
def spread(x): return (x & 3) * 16 + ((x >> 2) & 1) * 128 + ((x >> 3) & 1) * 256
E(f"v_lshrrev_b32 v{TMP+1}, 5, v{vL}\nv_xor_b32 v{TMP}, v{vJ}, v{TMP+1}\nv_and_b32 v{TMP+2}, 3, v{TMP}\nv_lshlrev_b32 v{TMP+2}, 4, v{TMP+2}")
E(f"v_lshrrev_b32 v{TMP}, 2, v{TMP}\nv_lshl_add_u32 v{TMP+2}, v{TMP}, 7, v{TMP+2}\nv_and_b32 v{TMP}, 1, v{vG}\nv_lshl_add_u32 v{TMP+2}, v{TMP}, 6, v{TMP+2}")
E(f"v_lshl_add_u32 v{vD}, v{TMP+1}, 14, v{TMP+2}")
for t in range(1, 8): E(f"v_xor_b32 v{vD+t}, {spread(2*t)}, v{vD}")
E(f"s_lshl_b32 s{sF0}, s{sB}, 12\ns_lshl_b32 s{sA}, s{sW}, 18\ns_add_u32 s{sE0}, s{sF0}, s{sA}\ns_lshl_b32 s{sM}, s{sW}, 13")
E(f"s_lshr_b32 s{sT}, s{sC}, 2\ns_lshl_b32 s{sT}, s{sT}, 9\ns_add_u32 s{sT}, s{sT}, s{sE0}")
E(f"s_mov_b32 s{SE+2}, {1<<20}\ns_mov_b32 s{SE+3}, 0x00020000\ns_mov_b32 s{SK+2}, {1<<28}\ns_mov_b32 s{SK+3}, 0x00020000")
E("s_waitcnt lgkmcnt(0)")
E(f"s_mov_b32 s{SE}, s10\ns_mov_b32 s{SE+1}, s11")
E(f"s_cmp_lt_u32 s{sC}, 2\ns_cbranch_scc0 L_noprobe\ns_cmp_eq_u32 s{sW}, 0\ns_cbranch_scc0 L_probed")
E(f"s_cmp_eq_u32 s{sC}, 0\ns_cselect_b32 s{SK}, s6, s8\ns_cselect_b32 s{SK+1}, s7, s9")
E(f"s_bfe_u32 s{sSIG}, s{sGRP}, 0x10001\ns_lshl_b32 s{sA}, s{sSIG}, 13\ns_add_u32 s{sA}, s{sA}, s{sKV}\ns_lshr_b32 s{sB}, s{sGRP}, 1\ns_lshl_b32 s{sB}, s{sB}, 8")
E(f"s_add_u32 s{sA}, s{sA}, s{sB}\ns_add_u32 s{sA}, s{sA}, 0x70000\ns_xor_b32 s{sB}, s{sA}, 0x2000\ns_mov_b64 exec, 1")
E.raw("  .p2align 6")
E(f"s_barrier\nbuffer_load_dword v{PL}, off, {srd(SK)}, s{sA} nt\nbuffer_load_dword v{PL+1}, off, {srd(SK)}, s{sB} nt\ns_barrier")
E("s_waitcnt vmcnt(1)\ns_memtime s[100:101]\ns_waitcnt vmcnt(0)\ns_memtime s[92:93]\ns_mov_b64 exec, -1\ns_branch L_noprobe")
E("L_probed:\ns_barrier\ns_barrier\nL_noprobe:")
def e_dma(B, ts=range(8)):
    for t in ts:
        if P["noE"]: h.tag[("D", B)] = 0; continue
        pat = P[f"D{B}"]; h.window(int(pat[t % len(pat)]))
        E(f"s_add_u32 m0, s{sM}, {(B & 1) * 32768 + t * 1024}")
        E(f"s_add_u32 s{sA}, s{sT}, {t * 32768 + B * 1024}")
        h.issue(f"buffer_load_dwordx4 v{vD+t}, {srd(SE)}, s{sA} offen {P['epol' if B else 'e0pol']} lds", ("D", B))
def first_touch(which):
    E(f"s_lshl_b32 s{sA}, s2, 12\ns_lshl_b32 s{sB}, s{sW}, 10\ns_add_u32 s{sA}, s{sA}, s{sB}\nv_lshlrev_b32 v{TMP+8}, 4, v{vL}")
    if "E" in which: E(f"buffer_load_dwordx4 {vr(PL+8)}, v{TMP+8}, {srd(SE)}, s{sA} offen")
    if "F" in which: E(f"buffer_load_dwordx4 {vr(PL+12)}, v{TMP+8}, {srd(SF)}, s{sA} offen")
if P["pfM"]:
    build_srd(SF, 12, 1 << 20); first_touch(P["pfM"])
N0 = int(P["D0"][0]) or 8
e_dma(0, range(N0))
E("s_branch L_helper")

E("L_stream:")
vKV, vEA, vSCW, vOW, vWA, vQ = 1, 2, 3, 4, 5, 6
RING, NSLOT = 8, 12
VBA, VBB, WA = 56, 88, 120
TT, TBO, ACK2, TBE, ACK1 = 56, 64, 68, 88, 92
def TB(T): return TBO if T & 1 else TBE
def ACK(u): return ACK2 if u & 1 else ACK1
def QR(u): return 84 if u == 3 else 108 + 4 * u
aE, aV = 0, 0
q = Q()
def win(k):
    T = k >> 3
    if T >= 64 - P["NE"]: return P["XE"]
    if T >= 64 - P["NE1"]: return P["XE1"]
    for part in filter(None, P["XR"].split("/")):
        lo, hi, pat = part.split(",")
        if int(lo) <= k < int(hi): return int(pat[k % len(pat)], 16)
    Tn = min(k + P["XS"], 511) >> 3
    if Tn < 32 and tile(Tn)[1] < 2: return P["XS"]
    if P["XP"]: return int(P["XP"][k % len(P["XP"])], 16)
    return P["X"]
next_load = [0]; based = [0]
def tile_base(T):
    u, b = tile(T)
    if T < 32 and b < 2: base, off = sKV, u * 4194304 + b * 8192
    else: base, off = (sKD if T < 32 else sVD), u * 4194304 + b * 65536
    r = sT2 if T & 1 else sT
    E(f"s_add_u32 s{r}, s{base}, {off}" if off else f"s_mov_b32 s{r}, s{base}")
    based[0] = T + 1
def issue_load():
    n = next_load[0]; next_load[0] += 1
    T, i = n >> 3, n & 7
    if based[0] <= T: tile_base(T)
    r = RING + (n % NSLOT) * 4
    q.issue(f"buffer_load_dwordx4 {vr(r)}, v{vKV}, {srd(SK if T < 32 else SV)}, s{sT2 if T & 1 else sT} offen offset:{i*256} {P['kvpol'].replace('+', ' ')}", ("ld", n))
E(f"v_lshlrev_b32 v{vQ}, 4, v{vJ}\nv_and_b32 v7, 1, v{vG}\nv_lshl_add_u32 v{vKV}, v7, 15, v{vQ}\nv_lshrrev_b32 v2, 1, v{vG}\nv_lshl_add_u32 v{vKV}, v2, 14, v{vKV}")
E(f"s_lshl_b32 s{sA}, s{sW}, 11\ns_add_u32 s{sKD}, s{sKV}, s{sA}\ns_lshr_b32 s{sA}, s{sC}, 2\ns_lshl_b32 s{sA}, s{sA}, 16\ns_add_u32 s{sKV}, s{sKD}, s{sA}")
E(f"s_lshl_b32 s{sB}, s{sHD}, 8")
E(f"s_mov_b32 s{SK+2}, {1<<28}\ns_mov_b32 s{SK+3}, 0x00020000\ns_mov_b32 s{SQ+2}, 32768\ns_mov_b32 s{SQ+3}, 0x00020000")
tile_base(0)
E("s_waitcnt lgkmcnt(0)")
E(f"s_mov_b32 s{SK}, s6\ns_mov_b32 s{SK+1}, s7\ns_mov_b32 s{SQ}, s4\ns_mov_b32 s{SQ+1}, s5")
E(f"s_cmp_lt_u32 s{sC}, 2\ns_cbranch_scc0 L_go\ns_barrier\ns_barrier\nL_go:")
for n in range(P["first"]): issue_load()
if P["prio"]: E(f"s_setprio {P['prio']}")
E(f"v_lshlrev_b32 v7, 3, v7\nv_lshl_add_u32 v7, v2, 2, v7\nv_add_u32 v7, s{sW}, v7")
E(f"v_xor_b32 v7, v7, v{vJ}\nv_lshlrev_b32 v7, 4, v7\nv_lshl_add_u32 v{vEA}, v{vJ}, 9, v7")
E(f"s_lshl_b32 s{sA}, s{sW}, 4\ns_add_u32 s{sA}, s{sA}, {L_SC}\nv_lshlrev_b32 v7, 6, v{vJ}\nv_lshl_add_u32 v7, v{vG}, 2, v7\nv_add_u32 v{vSCW}, s{sA}, v7")
E(f"s_lshl_b32 s{sA}, s{sW}, 9\ns_add_u32 s{sA}, s{sA}, {L_OL}\nv_lshlrev_b32 v7, 5, v{vJ}\nv_add_u32 v{vOW}, s{sA}, v7")
E(f"s_lshl_b32 s{sA}, s{sW}, 7\ns_add_u32 s{sA}, s{sA}, {L_WA}\nv_and_b32 v7, 1, v{vJ}\nv_lshlrev_b32 v7, 6, v7\nv_lshl_add_u32 v7, v{vG}, 4, v7\nv_add_u32 v{vWA}, s{sA}, v7")
def q_load(u): q.issue(f"buffer_load_dwordx4 {vr(QR(u))}, v{vQ}, {srd(SQ)}, s{sB} offen offset:{u*512} nt", ("q", u))
q_load(0); q_load(1)
build_srd(SV, 8, 1 << 28)
E(f"s_mov_b32 s{sSELL}, 0x05040100\ns_mov_b32 s{sSELH}, 0x07060302\nv_mov_b32 v7, {L_SG}")

def vbuf(T): return VBB if (T & 1) == 0 else VBA
def v_finish(T, es):
    for e in es:
        c_ = "0" if (T & 7) == 0 else ar(aV + e * 4)
        E(f"v_mfma_f32_16x16x32_bf16 {ar(aV+e*4)}, {vr(WA+(T&1)*4)}, {vr(vbuf(T)+e*4)}, {c_}")
def v_epi(u):
    E("s_mov_b64 exec, 0xffff")
    for e in range(8): E(f"ds_write_b32 v{vOW}, a{aV + e*4 + (u & 1)} offset:{u*2048 + e*4}")
    E("s_mov_b64 exec, -1")
def k_epi(u):
    a = ACK(u)
    for b in range(4): E(f"v_add_f32 v{a+b*4}, v{a+b*4}, v{a+b*4+1}")
    for b in range(4): E(f"v_add_f32 v{a+b*4+2}, v{a+b*4+2}, v{a+b*4+3}")
    for b in range(4): E(f"v_add_f32 v{a+b*4}, v{a+b*4}, v{a+b*4+2}")
    for b in range(4): E(f"ds_write_b32 v{vSCW}, v{a+b*4} offset:{(u & 1)*4096 + b*1024}")
last_tile = {tile(T)[0]: T for T in range(32)}
QL = P["first"]
lds_pending = False
for k in range(512):
    T, i = k >> 3, k & 7
    if i == 0: E(f"; ---- tile {T}")
    if P["stamps"] and not P["fine"] and i == 0 and T % 8 == 0 and T: E(f"s_memrealtime s[{70+2*(T//8-1)}:{71+2*(T//8-1)}]")
    q.wait(("ld", k))
    if P["fine"]:
        fs = [int(x) for x in P["fine"].split(",")]
        if k in fs: E(f"s_memrealtime s[{70+2*fs.index(k)}:{71+2*fs.index(k)}]")
    while next_load[0] < min(512, k + win(k) + 1): issue_load()
    assert not (k <= QL and next_load[0] > NSLOT), "ring slot reused before its row was consumed"
    oldest = next_load[0] - 1 - NSLOT
    assert k <= QL or oldest + (0 if oldest < 256 else (oldest & 1) ^ 1) < k
    if k in BARS: E("s_waitcnt lgkmcnt(0)\ns_barrier"); lds_pending = False
    elif lds_pending and (i == 0 or k in (SBAR[0] + 1, 510)): E("s_waitcnt lgkmcnt(0)"); lds_pending = False
    if k == SBAR[0]: E(f"ds_read_b64 v[{WA}:{WA+1}], v7"); lds_pending = True
    if k == SBAR[0] + 1:
        assert based[0] <= 4
        E(f"v_readfirstlane_b32 s{sA}, v{WA+1}\ns_add_u32 s{sVD}, s{sKD}, s{sA}\nv_readfirstlane_b32 s{sA}, v{WA}\ns_add_u32 s{sKD}, s{sKD}, s{sA}")
    if k == QL: q.wait(("q", 1))
    if k == 128: q.wait(("q", 3))
    if i == 0 and 0 < T <= 32:
        for m in range(4): E(f"v_cvt_pk_bf16_f32 v{TB(T-1)+m}, v{TT+2*m}, v{TT+2*m+1}")
    if T > 32 and i in (0, 2, 4, 6): v_finish(T - 1, (i, i + 1))
    if T < 32:
        for kk in ([] if k < QL else range(k + 1) if k == QL else [k]):
            for c4 in range(4):
                E(f"v_dot2_f32_bf16 v{TT+(kk&7)}, v{RING+(kk%NSLOT)*4+c4}, v{QR(tile(T)[0])+c4}, {'0' if c4 == 0 else 'v%d' % (TT+(kk&7))}")
    if i == 0 and 0 < T <= 32:
        for Tf in ([] if T - 1 in HELD else [T - 2, T - 1] if T - 2 in HELD else [T - 1]):
            u, b_ = tile(Tf)
            if Tf < 16: assert EBAR[b_ >> 1] + 4 <= k
            for blk in range(4):
                c_ = "0" if b_ == 0 else vr(ACK(u) + blk * 4)
                E(f"v_mfma_f32_16x16x32_bf16 {vr(ACK(u)+blk*4)}, {vr(TB(Tf))}, {ar(aE+(b_*4+blk)*4)}, {c_}")
    for u in range(4):
        if k == 8 * (last_tile[u] + 1) + 1: k_epi(u)
    if T >= 32 and i & 1:
        r, rp = RING + (k % NSLOT) * 4, RING + ((k - 1) % NSLOT) * 4
        for c4 in range(4):
            E(f"v_perm_b32 v{vbuf(T)+(2*c4)*4+(i>>1)}, v{r+c4}, v{rp+c4}, s{sSELL}")
            E(f"v_perm_b32 v{vbuf(T)+(2*c4+1)*4+(i>>1)}, v{r+c4}, v{rp+c4}, s{sSELH}")
    if T in (40, 48, 56) and i == 7: v_epi((T - 40) >> 3)
    for d in range(4):
        if k - d in EBAR:
            B = EBAR.index(k - d); b0 = d >> 1; lds_pending = True
            for blk in (2 * (d & 1), 2 * (d & 1) + 1):
                E(f"ds_read_b128 {ar(aE + ((2*B+b0)*4+blk)*4)}, v{vEA} offset:{(B & 1)*32768 + blk*8192 + b0*256}")
    if T >= 32 and i == 3:
        E(f"ds_read_b128 {vr(WA+(T&1)*4)}, v{vWA} offset:{((T-32)>>4)*4096 + (T&7)*512}"); lds_pending = True
    if k in (104, 106): q_load(2 + (k - 104) // 2)
    if (next_load[0] & 7) >= 4 and based[0] == (next_load[0] >> 3) + 1 and based[0] < 64 and (based[0] != 4 or k > SBAR[0]): tile_base(based[0])
if P["stamps"]: E("s_memrealtime s[84:85]")
v_finish(63, range(8))
v_epi(3)
if P["stamps"]:
    E(f"s_cmp_eq_u32 s{sW}, 0\ns_cbranch_scc0 L_nost\ns_waitcnt lgkmcnt(0)")
    for m, sr in enumerate((70, 72, 74, 76, 78, 80, 82, 84)): E(f"v_mov_b32 v{8+m}, s{sr}")
    E("v_mov_b32 v7, 0\nds_write_b128 v7, v[8:11]\nds_write_b128 v7, v[12:15] offset:16\nL_nost:")
E("s_waitcnt lgkmcnt(0)\ns_barrier\ns_endpgm")

E("L_helper:")
build_srd(SD, 16, 256)
E(f"s_lshl_b32 s{sA}, s{sW}, 3\ns_or_b32 s{sA}, s{sA}, s{sC}\ns_cmp_lt_u32 s{sA}, 2\ns_cbranch_scc0 L_voted\ns_waitcnt lgkmcnt(0)")
E(f"s_sub_u32 s92, s92, s100\ns_cmp_gt_u32 s92, {P['thr']}\ns_cselect_b32 s{sA}, 0, 1\ns_xor_b32 s{sA}, s{sA}, s{sSIG}\ns_xor_b32 s{sA}, s{sA}, s{sGRP}\ns_and_b32 s{sA}, s{sA}, 1")
E(f"s_lshl_b32 s{sB}, s{sC}, 3\ns_add_u32 s{sB}, s{sB}, 8\ns_lshl_b32 s{sA}, s{sA}, s{sB}\ns_add_u32 s{sA}, s{sA}, 1\nv_mov_b32 v{PL}, s{sA}\ns_mov_b64 exec, 1")
E(f"buffer_atomic_add v{PL}, off, {srd(SD)}, 0 sc1\ns_mov_b64 exec, -1\nL_voted:")
e_dma(0, range(N0, 8))
E(f"v_and_b32 v{TMP}, 1, v{vG}\nv_mul_u32_u24 v{TMP}, 448, v{TMP}")
if P["fullline"]:
    E(f"v_lshrrev_b32 v{TMP+1}, 5, v{vL}\nv_and_b32 v{TMP+2}, 31, v{vL}\nv_lshlrev_b32 v{TMP+2}, 4, v{TMP+2}\nv_lshl_add_u32 v{TMP+2}, v{TMP+1}, 14, v{TMP+2}")
    for t in range(8): E(f"v_mov_b32 v{vD+t}, v{TMP+2}")
    E(f"v_mov_b32 v{TMP}, 0")
for t in range(8): E(f"v_add_u32 v{vD+t}, v{vD+t}, v{TMP}")
build_srd(SF, 12, 1 << 20); build_srd(SO, 14, 32768); build_srd(SWS, 18, 1 << 30)
ce = struct.unpack("<I", struct.pack("<f", (128 ** -0.5) * math.log2(math.e)))[0]
E(f"s_mov_b32 s{sCE}, {ce:#x}\ns_lshl_b32 s{sSC}, s{sGRP}, 11")
E(f"s_lshl_b32 s{sOP}, s{sGRP}, 14\ns_add_u32 s{sOP}, s{sOP}, {OOFF}")
E(f"s_lshl_b32 s{sA}, s{sW}, 12\ns_add_u32 s{sO}, s{sOP}, s{sA}\ns_lshl_b32 s{sA}, s{sC}, 8\ns_add_u32 s{sO}, s{sO}, s{sA}")
E(f"s_lshl_b32 s{sA}, s{sC}, 11\ns_add_u32 s{sOP}, s{sOP}, s{sA}")
E(f"s_and_b32 s{sA}, s{sC}, 6\ns_add_u32 s{sOUT}, s{sHD}, s{sA}\ns_lshl_b32 s{sOUT}, s{sOUT}, 8\ns_and_b32 s{sA}, s{sC}, 1\ns_lshl_b32 s{sA}, s{sA}, 7\ns_add_u32 s{sOUT}, s{sOUT}, s{sA}")
E(f"s_lshl_b32 s{sFS}, s{sW}, 14\ns_cmp_ge_u32 s{sW}, 2\ns_cselect_b32 s{sA}, {L_F2 - 32768}, 0\ns_add_u32 s{sFS}, s{sFS}, s{sA}\ns_mov_b32 s{sA}, s{sFS}")
E(f"v_lshrrev_b32 v{TMP}, 2, v{vJ}\nv_lshl_add_u32 v{TMP}, v{vG}, 3, v{TMP}\nv_and_b32 v{TMP+1}, 1, v{vJ}\nv_lshlrev_b32 v{TMP+1}, 3, v{TMP+1}")
E(f"v_bfe_u32 v{TMP+2}, v{vJ}, 1, 1\nv_lshl_add_u32 v{TMP+1}, v{TMP+2}, 2, v{TMP+1}")
for hh in range(2):
    if hh: E(f"v_add_u32 v{TMP}, 4, v{TMP}")
    E(f"v_and_b32 v{TMP+2}, 15, v{TMP}\nv_xor_b32 v{TMP+2}, v{TMP+2}, v{TMP+1}\nv_lshlrev_b32 v{TMP+2}, 4, v{TMP+2}\nv_lshl_add_u32 v{TMP+2}, v{TMP}, 9, v{TMP+2}")
    E(f"v_add_u32 v{vFA+hh}, s{sA}, v{TMP+2}")
E(f"v_and_b32 v{TMP}, 1, v{vJ}\nv_lshlrev_b32 v{TMP+1}, 20, v{TMP}\nv_lshrrev_b32 v{TMP+2}, 1, v{vJ}\nv_lshl_add_u32 v{TMP+1}, v{TMP+2}, 8, v{TMP+1}\nv_lshl_add_u32 v{vSC}, v{vG}, 5, v{TMP+1}")
E(f"s_mov_b32 s{sSELA}, 0x0c0c0400\ns_mov_b32 s{sSELB}, 0x04000c0c\ns_mov_b32 s{sMASK}, 0xff")
E(f"s_lshl_b32 s{sA}, s{sW}, 10\ns_add_u32 s{sA}, s{sA}, {L_WA}\nv_lshlrev_b32 v{TMP}, 6, v{TMP}\nv_lshl_add_u32 v{TMP}, v{vG}, 4, v{TMP}\nv_add_u32 v{vWW}, s{sA}, v{TMP}")
E(f"v_lshlrev_b32 v{TMP}, 6, v{vL}\nv_add_u32 v{vSCR}, {L_SC}, v{TMP}\nv_lshlrev_b32 v{vL4}, 2, v{vL}")
E(f"v_lshlrev_b32 v{TMP}, 4, v{vL}\nv_add_u32 v{vPB}, {L_PB}, v{TMP}")
E(f"v_add_u32 v{vBW}, {L_PB}, v{vL4}\nv_and_b32 v{TMP}, 31, v{vL}\nv_lshlrev_b32 v{TMP}, 4, v{TMP}\nv_add_u32 v{vBR}, {L_PB}, v{TMP}")
E(f"s_lshl_b32 s{sA}, s{sW}, 11\ns_add_u32 s{sA}, s{sA}, {L_OL}\nv_add_u32 v{vOR}, s{sA}, v{TMP}")
E(f"v_and_b32 v{TMP}, 1, v{vG}\nv_lshlrev_b32 v{TMP+1}, 20, v{TMP}\nv_lshl_add_u32 v{vBS}, v{vJ}, 4, v{TMP+1}")
E(f"v_lshlrev_b32 v{TMP+1}, 11, v{TMP}\nv_lshl_add_u32 v{vOS}, v{vJ}, 4, v{TMP+1}")
E(f"v_lshlrev_b32 v{TMP+1}, 4, v{vJ}\nv_lshl_add_u32 v{vOP}, v{vG}, 8, v{TMP+1}\nv_lshlrev_b32 v{vOUT}, 3, v{vJ}")
E(f"v_lshl_add_u32 v{vOUT}, v{TMP}, 2, v{vOUT}\nv_lshrrev_b32 v{TMP}, 1, v{vG}\nv_lshl_add_u32 v{vOUT}, v{TMP}, 1, v{vOUT}")
def touch(sr, row0, col, nw):
    E(f"s_cmp_lt_u32 s{sW}, {nw}\ns_cbranch_scc0 L_t{sr}_{row0}_{col}")
    if nw == 2: E(f"s_lshl_b32 s{sA}, s{sGRP}, 1\ns_add_u32 s{sA}, s{sA}, s{sW}\ns_lshl_b32 s{sA}, s{sA}, 14")
    else: E(f"s_lshl_b32 s{sA}, s{sGRP}, 14\ns_lshl_b32 s{sB}, s{sW}, 10\ns_add_u32 s{sA}, s{sA}, s{sB}")
    E(f"s_and_b32 s{sB}, s{sC}, 3\ns_lshl_b32 s{sB}, s{sB}, 12\ns_add_u32 s{sA}, s{sA}, s{sB}\ns_add_u32 s{sA}, s{sA}, {row0*16384 + col}\nv_lshlrev_b32 v{TMP+8}, 4, v{vL}")
    E(f"buffer_load_dwordx4 {vr(PL+8)}, v{TMP+8}, {srd(sr)}, s{sA} offen {P['tpol']}\nL_t{sr}_{row0}_{col}:")
def split():
    E(f"s_mov_b32 s{sSPIN}, {min(P['spin'], 1 << 14)}\nL_tally:")
    E(f"buffer_load_dword v{vRDY}, off, {srd(SD)}, 0 sc1\ns_waitcnt vmcnt(0)\nv_readfirstlane_b32 s{sSIG}, v{vRDY}")
    E(f"s_and_b32 s{sA}, s{sSIG}, 0xff\ns_cmp_eq_u32 s{sA}, 64\ns_cbranch_scc1 L_tallied\ns_sleep 16\ns_sub_u32 s{sSPIN}, s{sSPIN}, 1\ns_cbranch_scc0 L_tally\nL_tallied:")
    h.done = h.n
    if P["force"] >= 0: E(f"s_mov_b32 s{sSIG}, {(P['force'] & 1) * 0x2000 + (P['force'] >> 1) * 0x200000}")
    E(f"s_lshr_b32 s{sB}, s{sC}, 2\ns_xor_b32 s{sB}, s{sB}, s{sGRP}\ns_and_b32 s{sB}, s{sB}, 1")
    for n, dst in ((0, sKD), (1, sVD)):
        E(f"s_bfe_u32 s{sA}, s{sSIG}, {0x80000 + 8 + 8*n:#x}\ns_cmp_gt_u32 s{sA}, 16\ns_cselect_b32 s{sA}, 1, 0\ns_xor_b32 s{dst}, s{sA}, s{sB}")
        E(f"s_lshl_b32 s{sA}, s{dst}, 13\nv_mov_b32 v{TMP+n}, s{sA}")
    E(f"v_mov_b32 v{TMP+2}, {L_SG}\nds_write_b64 v{TMP+2}, v[{TMP}:{TMP+1}]")
    sh = 9 if P["fullline"] else 6
    E(f"s_lshl_b32 s{sA}, s{sKD}, {sh}\ns_add_u32 s{sT}, s{sE0}, s{sA}\ns_lshl_b32 s{sA}, s{sVD}, {sh}\ns_add_u32 s{sF0}, s{sF0}, s{sA}\ns_lshl_b32 s{sFB}, s{sW}, 10\ns_add_u32 s{sFB}, s{sFB}, s{sF0}\ns_waitcnt lgkmcnt(0)")
NB = P["NB"] if P["early"] else 0
def nonce_load():
    E(f"s_lshl_b32 s{sB}, s{sGRP}, 14\ns_add_u32 s{sB}, s{sB}, {OOFF}")
    h.issue(f"buffer_load_dwordx4 {vr(PL)}, off, {srd(SWS)}, s{sB} sc1 nt", "old")
def nonce_make():
    h.wait("old")
    E(f"v_perm_b32 v{TMP}, v{PL+1}, v{PL}, s{sSELA}\nv_perm_b32 v{TMP+1}, v{PL+3}, v{PL+2}, s{sSELB}\nv_or_b32 v{TMP}, v{TMP}, v{TMP+1}")
    E(f"v_readfirstlane_b32 s{sA}, v{TMP}")
    E(f"s_mul_i32 s{sNON}, s{sA}, 0x9e3779b1\ns_add_u32 s{sNON}, s{sNON}, 0x7f4a7c15\ns_lshr_b32 s{sB}, s{sNON}, 15\ns_xor_b32 s{sNON}, s{sNON}, s{sB}")
    E(f"s_xor_b32 s{sB}, s{sNON}, 2\ns_cmp_eq_u32 s{sNON}, s{sA}\ns_cselect_b32 s{sNON}, s{sB}, s{sNON}")
    E(f"v_mov_b32 v{vRDY}, s{sNON}")
    E(f"v_and_b32 v{TMP}, 3, v{vL}\nv_lshlrev_b32 v{TMP}, 3, v{TMP}\nv_lshrrev_b32 v{vTG1}, v{TMP}, v{vRDY}")
    for m in range(4): E(f"v_lshrrev_b32 v{vTG+m}, {8*m}, v{vRDY}")
def tag_check(r, n):
    for m in range(n):
        E(f"v_perm_b32 v{TMP+2*m}, v{r+4*m+1}, v{r+4*m}, s{sSELA}\nv_perm_b32 v{TMP+2*m+1}, v{r+4*m+3}, v{r+4*m+2}, s{sSELB}")
    for m in range(n): E(f"v_or_b32 v{TMP+2*m}, v{TMP+2*m}, v{TMP+2*m+1}")
    for m in range(n): E(f"v_xor_b32 v{TMP+2*m}, s{sNON}, v{TMP+2*m}")
    for m in range(1, n): E(f"v_or_b32 v{TMP}, v{TMP}, v{TMP+2*m}")
    E(f"v_cmp_ne_u32 vcc, 0, v{TMP}")
def untag(r, n):
    for m in range(n): E(f"v_and_b32 v{r+m}, 0xffffff00, v{r+m}")
def publish(ev):
    E(f"s_cmp_eq_u32 s{sW}, 3\ns_cbranch_scc0 L_pub{ev}")
    for n in range(2):
        for m in range(4): E(f"ds_read_b128 {vr(S+m*4)}, v{vSCR} offset:{n*4096 + m*16}")
        E("s_waitcnt lgkmcnt(0)")
        for st in (8, 4, 2):
            for m in range(st): E(f"v_add_f32 v{S+m}, v{S+m}, v{S+m+st}")
        E(f"v_add_f32 v{WT+n}, v{S}, v{S+1}\nv_bfi_b32 v{WT+n}, s{sMASK}, v{vTG1}, v{WT+n}")
    E(f"ds_write_b32 v{vBW}, v{WT}\nds_write_b32 v{vBW}, v{WT+1} offset:256\ns_waitcnt lgkmcnt(0)\nds_read_b128 {vr(S)}, v{vBR}")
    E(f"s_lshl_b32 s{sA}, s{sC}, 8\ns_add_u32 s{sA}, s{sA}, s{sSC}\ns_add_u32 s{sA}, s{sA}, {ev * 65536}\ns_waitcnt lgkmcnt(0)\ns_mov_b32 exec_hi, 0")
    if "s" not in P["nosync"]: E(f"buffer_store_dwordx4 {vr(S)}, v{vBS}, {srd(SWS)}, s{sA} offen sc1")
    E(f"s_mov_b64 exec, -1\nL_pub{ev}:")
def f_loads(ks, ts):
    for t in ts:
        if P["noF"]: continue
        pat = P[f"F{ks}"]; h.window(int(pat[t % len(pat)]))
        E(f"s_add_u32 m0, s{sFS}, {t*1024}\ns_add_u32 s{sA}, s{sFB}, {ks*524288 + t*32768}")
        h.issue(f"buffer_load_dwordx4 v{vD+(t&7)}, {srd(SF)}, s{sA} offen {P['fpol']} lds")
def f_reads(ks):
    h.drain()
    for w_ in range(4):
        for hh in range(2): E(f"v_xor_b32 v{TMP+hh}, {w_*16}, v{vFA+hh}")
        for bb in range(2):
            for hb in range(2):
                for hh in range(2):
                    E(f"ds_read_b64_tr_b16 {ar(aFT + (((bb*4+w_)*2+hb)*2+ks)*4 + hh*2, 2)}, v{TMP+hh} offset:{bb*256 + hb*8}")
        E("s_waitcnt lgkmcnt(0)")
def xg(op, r):
    for sw in ("v_permlane32_swap_b32", "v_permlane16_swap_b32"):
        E(f"v_mov_b32 v{TMP+1}, v{r}\n{sw} v{TMP+1}, v{r}\n{op} v{r}, v{TMP+1}, v{r}")
def softmax(ev):
    E(f"s_cmp_eq_u32 s{sW}, 0\ns_cbranch_scc0 L_sm{ev}")
    if "l" not in P["nosync"]:
        E(f"s_add_u32 s{sA}, s{sSC}, {ev*65536}\ns_mov_b32 s{sSPIN}, {P['spin']}\nL_sc{ev}:")
        for m, o in enumerate((0, 16, 128, 144)): E(f"buffer_load_dwordx4 {vr(S+m*4)}, v{vSC}, {srd(SWS)}, s{sA} offen offset:{o} sc1")
        E("s_waitcnt vmcnt(0)")
        tag_check(S, 4)
        E(f"s_cbranch_vccz L_sc_ok{ev}\ns_sleep 8\ns_sub_u32 s{sSPIN}, s{sSPIN}, 1\ns_cbranch_scc0 L_sc{ev}\nL_sc_ok{ev}:")
    untag(S, 16)
    for ctl in ("quad_perm:[2,3,0,1]", "row_ror:4", "row_ror:8"):
        for m in range(16): E(f"v_add_f32_dpp v{S+m}, v{S+m}, v{S+m} {ctl} row_mask:0xf bank_mask:0xf")
    maxtree("v_max3_f32", TMP + 2, range(S, S + 16)); xg("v_max_f32", TMP + 2)
    E(f"v_mul_f32 v{TMP+2}, s{sCE}, v{TMP+2}")
    for m in range(16): E(f"v_fma_f32 v{S+m}, v{S+m}, s{sCE}, -v{TMP+2}")
    for m in range(16): E(f"v_exp_f32 v{S+m}, v{S+m}")
    for m in range(4): E(f"v_add_f32 v{TMP+4+m}, v{S+m}, v{S+m+4}")
    for m in range(4): E(f"v_add_f32 v{TMP+8+m}, v{S+m+8}, v{S+m+12}")
    for m in range(4): E(f"v_add_f32 v{TMP+4+m}, v{TMP+4+m}, v{TMP+8+m}")
    E(f"v_add_f32 v{TMP+4}, v{TMP+4}, v{TMP+5}\nv_add_f32 v{TMP+6}, v{TMP+6}, v{TMP+7}\nv_add_f32 v{TMP+3}, v{TMP+4}, v{TMP+6}")
    xg("v_add_f32", TMP + 3)
    E(f"v_rcp_f32 v{TMP+3}, v{TMP+3}")
    for m in range(16): E(f"v_mul_f32 v{S+m}, v{S+m}, v{TMP+3}")
    for m in range(8): E(f"v_cvt_pk_bf16_f32 v{PB+m}, v{S+2*m}, v{S+2*m+1}")
    E(f"ds_write_b128 v{vPB}, {vr(PB)}\nds_write_b128 v{vPB}, {vr(PB+4)} offset:1024\ns_waitcnt lgkmcnt(0)\nL_sm{ev}:")
def weights(ev):
    E(f"ds_read_b128 {vr(PB)}, v{vPB}\nds_read_b128 {vr(PB+4)}, v{vPB} offset:1024")
    E("s_mov_b32 s100, 0x00030003\ns_mov_b32 s101, 0x00030003\ns_waitcnt lgkmcnt(0)")
    for bb in range(2):
        for w_ in range(4):
            for ks in range(2):
                for hb in range(2):
                    c_ = "0" if ks == 0 else vr(DD + hb * 4)
                    E(f"v_mfma_f32_16x16x32_bf16 {vr(DD+hb*4)}, {ar(aFT + (((bb*4+w_)*2+hb)*2+ks)*4)}, {vr(PB+ks*4)}, {c_}")
            for kk in range(4): E(f"v_cvt_pk_bf16_f32 v{WT+kk}, v{DD+2*kk}, v{DD+2*kk+1}")
            E(f"s_mov_b64 exec, s[100:101]\nds_write_b128 v{vWW}, {vr(WT)} offset:{ev*4096 + bb*512 + w_*128}\ns_mov_b64 exec, -1")
    E("s_waitcnt lgkmcnt(0)")
for k in BARS:
    if k in EBAR:
        B = EBAR.index(k)
        h.wait(("D", B))
        E("s_barrier")
        if B == 0 and P["tE"]: touch(SE, 0, 1024, 2)
        if B == P["pfLb"] and P["pfL"]: first_touch(P["pfL"])
        if B == 0: split()
        if B == 1 and P["tE"]: touch(SE, 0, 3072, 2)
        if B == 2 and P["tF"]: touch(SF, 0, 0, 4)
        if B == 1: nonce_load()
        if B == 2: nonce_make()
        if 0 < B < 3: e_dma(B + 1)
        if B == 3: f_loads(0, range(NB))
    elif k in SBAR:
        E("s_barrier"); e_dma(1)
        if P["tE"]: touch(SE, 0, 2048, 2)
    elif k in UBAR:
        E("s_barrier")
        publish(UBAR.index(k))
        if k == UBAR[0]:
            f_loads(0, range(NB, 12))
            if P["tF"]: touch(SF, 32, 0, 4)
            f_loads(0, range(12, 16)); f_reads(0)
            if P["smpos"]: softmax(0)
            f_loads(1, range(16)); f_reads(1)
            if not P["smpos"]: softmax(0)
    elif k in PBAR:
        E("s_barrier"); weights(PBAR.index(k))
    elif k == XBAR[0]:
        E("s_barrier"); softmax(1)
    else:
        E("s_barrier")
E("s_barrier")
for w_ in range(4): E(f"ds_read_b128 {vr(S+w_*4)}, v{vOR} offset:{w_*512}")
E("s_mov_b32 exec_hi, 0\ns_waitcnt lgkmcnt(2)")
for m in range(4): E(f"v_add_f32 v{S+m}, v{S+m}, v{S+4+m}")
E("s_waitcnt lgkmcnt(0)")
for m in range(4): E(f"v_add_f32 v{S+8+m}, v{S+8+m}, v{S+12+m}")
for m in range(4): E(f"v_add_f32 v{S+m}, v{S+m}, v{S+8+m}")
for m in range(4): E(f"v_bfi_b32 v{S+m}, s{sMASK}, v{vTG+m}, v{S+m}")
E(f"buffer_store_dwordx4 {vr(S)}, v{vOS}, {srd(SWS)}, s{sO} offen sc1\ns_mov_b64 exec, -1")
E(f"s_cmp_eq_u32 s{sW}, 0\ns_cbranch_scc0 L_done")
if P["stamps"]: E("s_memrealtime s[86:87]")
E(f"s_mov_b32 s{sSPIN}, {P['spin']}\nL_poll:")
E(f"buffer_load_dwordx4 {vr(PL)}, v{vOP}, {srd(SWS)}, s{sOP} offen sc1")
E(f"buffer_load_dwordx4 {vr(PL+4)}, v{vOP}, {srd(SWS)}, s{sOP} offen offset:1024 sc1")
E("s_waitcnt vmcnt(0)")
tag_check(PL, 2)
E(f"s_sub_u32 s{sSPIN}, s{sSPIN}, 1\ns_cbranch_scc1 L_got\ns_cbranch_vccnz L_poll\nL_got:")
untag(PL, 8)
for m in range(4): E(f"v_add_f32 v{PL+m}, v{PL+m}, v{PL+4+m}")
E(f"v_permlane32_swap_b32 v{PL}, v{PL+1}\nv_permlane32_swap_b32 v{PL+2}, v{PL+3}")
E(f"v_add_f32 v{PL}, v{PL}, v{PL+1}\nv_add_f32 v{PL+2}, v{PL+2}, v{PL+3}")
E(f"v_permlane16_swap_b32 v{PL}, v{PL+2}\nv_add_f32 v{PL}, v{PL}, v{PL+2}\nv_cvt_pk_bf16_f32 v{PL+4}, v{PL}, v{PL}")
if P["fixt"]:
    E(f"L_fix:\ns_memrealtime s[92:93]\ns_waitcnt lgkmcnt(0)\ns_sub_u32 s92, s92, s90\ns_cmp_lt_u32 s92, {P['fixt']}\ns_cbranch_scc1 L_fix")
E(f"buffer_store_short v{PL+4}, v{vOUT}, {srd(SO)}, s{sOUT} offen")
if P["stamps"]:
    E("s_waitcnt vmcnt(0)\ns_memrealtime s[92:93]\ns_getreg_b32 s72, hwreg(HW_REG_XCC_ID)")
    E(f"v_mov_b32 v{TMP}, 0\nds_read_b128 v[56:59], v{TMP}\nds_read_b128 v[60:63], v{TMP} offset:16\ns_waitcnt lgkmcnt(0)")
    E("s_sub_u32 s86, s86, s90")
    for m in range(8): E(f"v_subrev_u32 v{56+m}, s90, v{56+m}")
    for m, sr in enumerate((90, 91, 92, 93, 72, 84, 86, sSIG)): E(f"v_mov_b32 v{48+m}, s{sr}")
    E("v_mov_b32 v53, v63")
    E(f"s_lshl_b32 s{sA}, s2, 6\ns_add_u32 s{sA}, s{sA}, 0x20000000\ns_mov_b64 exec, 1")
    for m in range(4): E(f"buffer_store_dwordx4 {vr(48+m*4)}, off, {srd(SWS)}, s{sA} offset:{m*16}")
E("L_done:\ns_endpgm")
E.raw('.section .rodata,"a"\n.p2align 6')
E.raw(f""".amdhsa_kernel {NAME}
  .amdhsa_next_free_vgpr 256
  .amdhsa_next_free_sgpr 102
  .amdhsa_accum_offset 128
  .amdhsa_group_segment_fixed_size 0
  .amdhsa_float_denorm_mode_32 3
  .amdhsa_kernarg_size 64
  .amdhsa_user_sgpr_count 2
  .amdhsa_user_sgpr_kernarg_segment_ptr 1
  .amdhsa_system_sgpr_workgroup_id_x 1
.end_amdhsa_kernel""")
open(out, "w").write(E.text())
print(out, "instructions", E.count, "auto nops", E.nops, "held", HELD, file=sys.stderr)
```

```python
import sys, struct, math
from emit import Emitter

P = dict(X=5, XE=10, NE=4, XS=5, XR="", first=5, stamps=0, fine="", spin=1 << 20, prio=1,
         D0="3", D1="2", D2="12", D3="12", F0="12", F1="12", NB=3, early=1, smpos=1, PB0=246, PB1=352, SM1=320, SB=20, EB="12,44,76,108", noE=0, noF=0, nosync="",
         jit=0, force=-1, thr=64, fixt=0, fullline=0, kvpol="nt", efpol="", tE=0, tF=0, tpol="nt", pfM="EF", pfL="", pfLb=1, e0pol="nt", pfpos=2, epol="", fpol="", XP="5554", XE1=7, NE1=0)
out = sys.argv[1]
for a in sys.argv[2:]:
    k, v = a.split("="); P[k] = int(v, 0) if isinstance(P[k], int) else v
NAME = "standalone__low_rank_proj_linformer__decode_kernel"
E = Emitter()

def srd(n): return f"s[{n}:{n+3}]"
def vr(n, k=4): return f"v[{n}:{n+k-1}]"
def ar(n, k=4): return f"a[{n}:{n+k-1}]"
SK, SV, SE, SF, SQ, SO, SD, SWS = 20, 24, 28, 32, 36, 40, 44, 48
sW, sGRP, sC, sKV, sT, sA, sB, sSELL, sSELH, sCE, sE0, sM, sSC, sO, sOP, sOUT, sSPIN, sT2 = 3, *range(52, 69)
sKD, sVD, sHD, sFS, sFB = 69, 88, 89, 70, 71
sNON, sSELA, sSELB, sMASK, sSIG, sF0 = 94, 95, 96, 97, 98, 99
HB = 0x100000; OOFF = 0x40000
L_SC = 65536; L_OL = L_SC + 8192; L_WA = L_OL + 8192; L_PB = L_WA + 8192; L_SG = L_PB + 2048; L_F2 = L_SG + 1024; LDS_BYTES = L_F2 + 32768

class Q:
    def __init__(s): s.n = 0; s.done = 0; s.tag = {}
    def issue(s, text, tag=None):
        E(text); s.n += 1
        if tag is not None: s.tag[tag] = s.n
    def wait(s, tag):
        idx = s.tag[tag]
        if idx <= s.done: return
        assert s.n - idx <= 63
        E(f"s_waitcnt vmcnt({s.n - idx})"); s.done = idx
    def window(s, w):
        if w and s.n - s.done >= w: E(f"s_waitcnt vmcnt({w-1})"); s.done = s.n - (w - 1)
    def drain(s): E("s_waitcnt vmcnt(0)"); s.done = s.n
def build_srd(n, lo, size):
    E(f"s_mov_b32 s{n}, s{lo}\ns_mov_b32 s{n+1}, s{lo+1}\ns_mov_b32 s{n+2}, {size}\ns_mov_b32 s{n+3}, 0x00020000")
def maxtree(op, dst, regsl):
    r = list(regsl)
    E(f"{op} v{dst}, v{r[0]}, v{r[1]}, v{r[2]}"); r = r[3:]
    while len(r) >= 2: E(f"{op} v{dst}, v{dst}, v{r[0]}, v{r[1]}"); r = r[2:]
    if r: E(f"{op} v{dst}, v{dst}, v{r[0]}, v{r[0]}")

def tile(T):
    if T < 32: return (T >> 4) * 2 + ((T >> 1) & 1), ((T >> 2) & 3) * 2 + (T & 1)
    return (T >> 3) & 3, T & 7

EBAR = [int(x) for x in P["EB"].split(",")]
SBAR = [P["SB"]]
UBAR = [130, 258]
PBAR = [P["PB0"], P["PB1"]]
XBAR = [P["SM1"], 384]
BARS = sorted(EBAR + SBAR + UBAR + PBAR + XBAR)
HELD = [T for T in range(0, 16, 4) if EBAR[T >> 2] + 4 > 8 * (T + 1)]

E.raw(f"; @launch grid=(256,1,1) block=(512,1,1) lds={LDS_BYTES}")
E.raw('.amdgcn_target "amdgcn-amd-amdhsa--gfx950"\n.text')
E.raw(f".globl {NAME}\n.p2align 8\n.type {NAME},@function\n{NAME}:")
E("s_load_dwordx16 s[4:19], s[0:1], 0")
if P["stamps"] or P["fixt"]: E("s_memrealtime s[90:91]")
E("s_cmp_ge_u32 s2, 256\ns_cbranch_scc1 L_done")
vL, vJ, vG = 0, 126, 127
E(f"v_lshrrev_b32 v1, 6, v0\nv_and_b32 v{vL}, 63, v0")
E(f"v_readfirstlane_b32 s{sW}, v1")
E(f"v_and_b32 v{vJ}, 15, v{vL}\nv_lshrrev_b32 v{vG}, 4, v{vL}")
E(f"s_lshr_b32 s{sGRP}, s2, 3\ns_and_b32 s{sC}, s2, 7")
E(f"s_lshr_b32 s{sHD}, s{sGRP}, 1\ns_lshl_b32 s{sHD}, s{sHD}, 3\ns_and_b32 s{sA}, s{sGRP}, 1\ns_add_u32 s{sHD}, s{sHD}, s{sA}")
E(f"s_lshl_b32 s{sKV}, s{sHD}, 21\ns_and_b32 s{sB}, s{sC}, 3\ns_lshl_b32 s{sA}, s{sB}, 19\ns_add_u32 s{sKV}, s{sKV}, s{sA}")
if P["jit"]:
    E(f"s_mul_i32 s{sA}, s2, 37\ns_mul_i32 s{sT}, s{sW}, {P['jit'] & 1}\ns_add_u32 s{sA}, s{sA}, s{sT}\ns_lshr_b32 s{sA}, s{sA}, 2\ns_and_b32 s{sA}, s{sA}, 15\ns_cmp_lt_u32 s{sA}, 12\ns_cbranch_scc1 L_nojit")
    E(f"s_sub_u32 s{sA}, s{sA}, 11\ns_mul_i32 s{sA}, s{sA}, {P['jit']}\nL_jit:\ns_sleep 64\ns_sub_u32 s{sA}, s{sA}, 1\ns_cmp_lg_u32 s{sA}, 0\ns_cbranch_scc1 L_jit\nL_nojit:")
E(f"s_cmp_ge_u32 s{sW}, 4\ns_cbranch_scc0 L_stream")

vD, vFA, vSC, vSCR, vL4, vOR, vOS, vOP, vOUT, vRDY, vWW, vTG1, vPB, vBW, vBR, vBS = 4, 12, *range(16, 30)
vTG = 112
S, PB, DD, WT, TMP, PL = 32, 48, 56, 64, 68, 80
aFT = 0
h = Q()
E(f"s_sub_u32 s{sW}, s{sW}, 4")
def spread(x): return (x & 3) * 16 + ((x >> 2) & 1) * 128 + ((x >> 3) & 1) * 256
E(f"v_lshrrev_b32 v{TMP+1}, 5, v{vL}\nv_xor_b32 v{TMP}, v{vJ}, v{TMP+1}\nv_and_b32 v{TMP+2}, 3, v{TMP}\nv_lshlrev_b32 v{TMP+2}, 4, v{TMP+2}")
E(f"v_lshrrev_b32 v{TMP}, 2, v{TMP}\nv_lshl_add_u32 v{TMP+2}, v{TMP}, 7, v{TMP+2}\nv_and_b32 v{TMP}, 1, v{vG}\nv_lshl_add_u32 v{TMP+2}, v{TMP}, 6, v{TMP+2}")
E(f"v_lshl_add_u32 v{vD}, v{TMP+1}, 14, v{TMP+2}")
for t in range(1, 8): E(f"v_xor_b32 v{vD+t}, {spread(2*t)}, v{vD}")
E(f"s_lshl_b32 s{sF0}, s{sB}, 12\ns_lshl_b32 s{sA}, s{sW}, 18\ns_add_u32 s{sE0}, s{sF0}, s{sA}\ns_lshl_b32 s{sM}, s{sW}, 13")
E(f"s_lshr_b32 s{sT}, s{sC}, 2\ns_lshl_b32 s{sT}, s{sT}, 9\ns_add_u32 s{sT}, s{sT}, s{sE0}")
E(f"s_mov_b32 s{SE+2}, {1<<20}\ns_mov_b32 s{SE+3}, 0x00020000\ns_mov_b32 s{SK+2}, {1<<28}\ns_mov_b32 s{SK+3}, 0x00020000")
E("s_waitcnt lgkmcnt(0)")
E(f"s_mov_b32 s{SE}, s10\ns_mov_b32 s{SE+1}, s11")
E(f"s_cmp_lt_u32 s{sC}, 2\ns_cbranch_scc0 L_noprobe\ns_cmp_eq_u32 s{sW}, 0\ns_cbranch_scc0 L_probed")
E(f"s_cmp_eq_u32 s{sC}, 0\ns_cselect_b32 s{SK}, s6, s8\ns_cselect_b32 s{SK+1}, s7, s9")
E(f"s_bfe_u32 s{sSIG}, s{sGRP}, 0x10001\ns_lshl_b32 s{sA}, s{sSIG}, 13\ns_add_u32 s{sA}, s{sA}, s{sKV}\ns_lshr_b32 s{sB}, s{sGRP}, 1\ns_lshl_b32 s{sB}, s{sB}, 8")
E(f"s_add_u32 s{sA}, s{sA}, s{sB}\ns_add_u32 s{sA}, s{sA}, 0x70000\ns_xor_b32 s{sB}, s{sA}, 0x2000\ns_mov_b64 exec, 1")
E.raw("  .p2align 6")
E(f"s_barrier\nbuffer_load_dword v{PL}, off, {srd(SK)}, s{sA} nt\nbuffer_load_dword v{PL+1}, off, {srd(SK)}, s{sB} nt\ns_barrier")
E("s_waitcnt vmcnt(1)\ns_memtime s[100:101]\ns_waitcnt vmcnt(0)\ns_memtime s[92:93]\ns_mov_b64 exec, -1\ns_branch L_noprobe")
E("L_probed:\ns_barrier\ns_barrier\nL_noprobe:")
def e_dma(B, ts=range(8)):
    for t in ts:
        if P["noE"]: h.tag[("D", B)] = 0; continue
        pat = P[f"D{B}"]; h.window(int(pat[t % len(pat)]))
        E(f"s_add_u32 m0, s{sM}, {(B & 1) * 32768 + t * 1024}")
        E(f"s_add_u32 s{sA}, s{sT}, {t * 32768 + B * 1024}")
        h.issue(f"buffer_load_dwordx4 v{vD+t}, {srd(SE)}, s{sA} offen {P['epol' if B else 'e0pol']} lds", ("D", B))
def first_touch(which):
    E(f"s_lshl_b32 s{sA}, s2, 12\ns_lshl_b32 s{sB}, s{sW}, 10\ns_add_u32 s{sA}, s{sA}, s{sB}\nv_lshlrev_b32 v{TMP+8}, 4, v{vL}")
    if "E" in which: E(f"buffer_load_dwordx4 {vr(PL+8)}, v{TMP+8}, {srd(SE)}, s{sA} offen")
    if "F" in which: E(f"buffer_load_dwordx4 {vr(PL+12)}, v{TMP+8}, {srd(SF)}, s{sA} offen")
if P["pfM"] and P["pfpos"] == 0:
    build_srd(SF, 12, 1 << 20); first_touch(P["pfM"])
N0 = int(P["D0"][0]) or 8
e_dma(0, range(N0))
E("s_branch L_helper")

E("L_stream:")
vKV, vEA, vSCW, vOW, vWA, vQ = 1, 2, 3, 4, 5, 6
RING, NSLOT = 8, 12
VBA, VBB, WA = 56, 88, 120
TT, TBO, ACK2, TBE, ACK1 = 56, 64, 68, 88, 92
def TB(T): return TBO if T & 1 else TBE
def ACK(u): return ACK2 if u & 1 else ACK1
def QR(u): return 84 if u == 3 else 108 + 4 * u
aE, aV = 0, 0
q = Q()
def win(k):
    T = k >> 3
    if T >= 64 - P["NE"]: return P["XE"]
    if T >= 64 - P["NE1"]: return P["XE1"]
    for part in filter(None, P["XR"].split("/")):
        lo, hi, pat = part.split(",")
        if int(lo) <= k < int(hi): return int(pat[k % len(pat)], 16)
    Tn = min(k + P["XS"], 511) >> 3
    if Tn < 32 and tile(Tn)[1] < 2: return P["XS"]
    if P["XP"]: return int(P["XP"][k % len(P["XP"])], 16)
    return P["X"]
next_load = [0]; based = [0]
def tile_base(T):
    u, b = tile(T)
    if T < 32 and b < 2: base, off = sKV, u * 4194304 + b * 8192
    else: base, off = (sKD if T < 32 else sVD), u * 4194304 + b * 65536
    r = sT2 if T & 1 else sT
    E(f"s_add_u32 s{r}, s{base}, {off}" if off else f"s_mov_b32 s{r}, s{base}")
    based[0] = T + 1
def issue_load():
    n = next_load[0]; next_load[0] += 1
    T, i = n >> 3, n & 7
    if based[0] <= T: tile_base(T)
    r = RING + (n % NSLOT) * 4
    q.issue(f"buffer_load_dwordx4 {vr(r)}, v{vKV}, {srd(SK if T < 32 else SV)}, s{sT2 if T & 1 else sT} offen offset:{i*256} {P['kvpol'].replace('+', ' ')}", ("ld", n))
E(f"v_lshlrev_b32 v{vQ}, 4, v{vJ}\nv_and_b32 v7, 1, v{vG}\nv_lshl_add_u32 v{vKV}, v7, 15, v{vQ}\nv_lshrrev_b32 v2, 1, v{vG}\nv_lshl_add_u32 v{vKV}, v2, 14, v{vKV}")
E(f"s_lshl_b32 s{sA}, s{sW}, 11\ns_add_u32 s{sKD}, s{sKV}, s{sA}\ns_lshr_b32 s{sA}, s{sC}, 2\ns_lshl_b32 s{sA}, s{sA}, 16\ns_add_u32 s{sKV}, s{sKD}, s{sA}")
E(f"s_lshl_b32 s{sB}, s{sHD}, 8")
E(f"s_mov_b32 s{SK+2}, {1<<28}\ns_mov_b32 s{SK+3}, 0x00020000\ns_mov_b32 s{SQ+2}, 32768\ns_mov_b32 s{SQ+3}, 0x00020000")
tile_base(0)
E("s_waitcnt lgkmcnt(0)")
E(f"s_mov_b32 s{SK}, s6\ns_mov_b32 s{SK+1}, s7\ns_mov_b32 s{SQ}, s4\ns_mov_b32 s{SQ+1}, s5")
E(f"s_cmp_lt_u32 s{sC}, 2\ns_cbranch_scc0 L_go\ns_barrier\ns_barrier\nL_go:")
for n in range(P["first"]): issue_load()
if P["prio"]: E(f"s_setprio {P['prio']}")
E(f"v_lshlrev_b32 v7, 3, v7\nv_lshl_add_u32 v7, v2, 2, v7\nv_add_u32 v7, s{sW}, v7")
E(f"v_xor_b32 v7, v7, v{vJ}\nv_lshlrev_b32 v7, 4, v7\nv_lshl_add_u32 v{vEA}, v{vJ}, 9, v7")
E(f"s_lshl_b32 s{sA}, s{sW}, 4\ns_add_u32 s{sA}, s{sA}, {L_SC}\nv_lshlrev_b32 v7, 6, v{vJ}\nv_lshl_add_u32 v7, v{vG}, 2, v7\nv_add_u32 v{vSCW}, s{sA}, v7")
E(f"s_lshl_b32 s{sA}, s{sW}, 9\ns_add_u32 s{sA}, s{sA}, {L_OL}\nv_lshlrev_b32 v7, 5, v{vJ}\nv_add_u32 v{vOW}, s{sA}, v7")
E(f"s_lshl_b32 s{sA}, s{sW}, 7\ns_add_u32 s{sA}, s{sA}, {L_WA}\nv_and_b32 v7, 1, v{vJ}\nv_lshlrev_b32 v7, 6, v7\nv_lshl_add_u32 v7, v{vG}, 4, v7\nv_add_u32 v{vWA}, s{sA}, v7")
def q_load(u): q.issue(f"buffer_load_dwordx4 {vr(QR(u))}, v{vQ}, {srd(SQ)}, s{sB} offen offset:{u*512} nt", ("q", u))
q_load(0); q_load(1)
build_srd(SV, 8, 1 << 28)
E(f"s_mov_b32 s{sSELL}, 0x05040100\ns_mov_b32 s{sSELH}, 0x07060302\nv_mov_b32 v7, {L_SG}")

def vbuf(T): return VBB if (T & 1) == 0 else VBA
def v_finish(T, es):
    for e in es:
        c_ = "0" if (T & 7) == 0 else ar(aV + e * 4)
        E(f"v_mfma_f32_16x16x32_bf16 {ar(aV+e*4)}, {vr(WA+(T&1)*4)}, {vr(vbuf(T)+e*4)}, {c_}")
def v_epi(u):
    E("s_mov_b64 exec, 0xffff")
    for e in range(8): E(f"ds_write_b32 v{vOW}, a{aV + e*4 + (u & 1)} offset:{u*2048 + e*4}")
    E("s_mov_b64 exec, -1")
def k_epi(u):
    a = ACK(u)
    for b in range(4): E(f"v_add_f32 v{a+b*4}, v{a+b*4}, v{a+b*4+1}")
    for b in range(4): E(f"v_add_f32 v{a+b*4+2}, v{a+b*4+2}, v{a+b*4+3}")
    for b in range(4): E(f"v_add_f32 v{a+b*4}, v{a+b*4}, v{a+b*4+2}")
    for b in range(4): E(f"ds_write_b32 v{vSCW}, v{a+b*4} offset:{(u & 1)*4096 + b*1024}")
last_tile = {tile(T)[0]: T for T in range(32)}
QL = P["first"]
lds_pending = False
for k in range(512):
    T, i = k >> 3, k & 7
    if i == 0: E(f"; ---- tile {T}")
    if P["stamps"] and not P["fine"] and i == 0 and T % 8 == 0 and T: E(f"s_memrealtime s[{70+2*(T//8-1)}:{71+2*(T//8-1)}]")
    q.wait(("ld", k))
    if P["fine"]:
        fs = [int(x) for x in P["fine"].split(",")]
        if k in fs: E(f"s_memrealtime s[{70+2*fs.index(k)}:{71+2*fs.index(k)}]")
    while next_load[0] < min(512, k + win(k) + 1): issue_load()
    assert not (k <= QL and next_load[0] > NSLOT), "ring slot reused before its row was consumed"
    oldest = next_load[0] - 1 - NSLOT
    assert k <= QL or oldest + (0 if oldest < 256 else (oldest & 1) ^ 1) < k
    if k in BARS: E("s_waitcnt lgkmcnt(0)\ns_barrier"); lds_pending = False
    elif lds_pending and (i == 0 or k in (SBAR[0] + 1, 510)): E("s_waitcnt lgkmcnt(0)"); lds_pending = False
    if k == SBAR[0]: E(f"ds_read_b64 v[{WA}:{WA+1}], v7"); lds_pending = True
    if k == SBAR[0] + 1:
        assert based[0] <= 4
        E(f"v_readfirstlane_b32 s{sA}, v{WA+1}\ns_add_u32 s{sVD}, s{sKD}, s{sA}\nv_readfirstlane_b32 s{sA}, v{WA}\ns_add_u32 s{sKD}, s{sKD}, s{sA}")
    if k == QL: q.wait(("q", 1))
    if k == 128: q.wait(("q", 3))
    if i == 0 and 0 < T <= 32:
        for m in range(4): E(f"v_cvt_pk_bf16_f32 v{TB(T-1)+m}, v{TT+2*m}, v{TT+2*m+1}")
    if T > 32 and i in (0, 2, 4, 6): v_finish(T - 1, (i, i + 1))
    if T < 32:
        for kk in ([] if k < QL else range(k + 1) if k == QL else [k]):
            for c4 in range(4):
                E(f"v_dot2_f32_bf16 v{TT+(kk&7)}, v{RING+(kk%NSLOT)*4+c4}, v{QR(tile(T)[0])+c4}, {'0' if c4 == 0 else 'v%d' % (TT+(kk&7))}")
    if i == 0 and 0 < T <= 32:
        for Tf in ([] if T - 1 in HELD else [T - 2, T - 1] if T - 2 in HELD else [T - 1]):
            u, b_ = tile(Tf)
            if Tf < 16: assert EBAR[b_ >> 1] + 4 <= k
            for blk in range(4):
                c_ = "0" if b_ == 0 else vr(ACK(u) + blk * 4)
                E(f"v_mfma_f32_16x16x32_bf16 {vr(ACK(u)+blk*4)}, {vr(TB(Tf))}, {ar(aE+(b_*4+blk)*4)}, {c_}")
    for u in range(4):
        if k == 8 * (last_tile[u] + 1) + 1: k_epi(u)
    if T >= 32 and i & 1:
        r, rp = RING + (k % NSLOT) * 4, RING + ((k - 1) % NSLOT) * 4
        for c4 in range(4):
            E(f"v_perm_b32 v{vbuf(T)+(2*c4)*4+(i>>1)}, v{r+c4}, v{rp+c4}, s{sSELL}")
            E(f"v_perm_b32 v{vbuf(T)+(2*c4+1)*4+(i>>1)}, v{r+c4}, v{rp+c4}, s{sSELH}")
    if T in (40, 48, 56) and i == 7: v_epi((T - 40) >> 3)
    for d in range(4):
        if k - d in EBAR:
            B = EBAR.index(k - d); b0 = d >> 1; lds_pending = True
            for blk in (2 * (d & 1), 2 * (d & 1) + 1):
                E(f"ds_read_b128 {ar(aE + ((2*B+b0)*4+blk)*4)}, v{vEA} offset:{(B & 1)*32768 + blk*8192 + b0*256}")
    if T >= 32 and i == 3:
        E(f"ds_read_b128 {vr(WA+(T&1)*4)}, v{vWA} offset:{((T-32)>>4)*4096 + (T&7)*512}"); lds_pending = True
    if k in (104, 106): q_load(2 + (k - 104) // 2)
    if (next_load[0] & 7) >= 4 and based[0] == (next_load[0] >> 3) + 1 and based[0] < 64 and (based[0] != 4 or k > SBAR[0]): tile_base(based[0])
if P["stamps"]: E("s_memrealtime s[84:85]")
v_finish(63, range(8))
v_epi(3)
if P["stamps"]:
    E(f"s_cmp_eq_u32 s{sW}, 0\ns_cbranch_scc0 L_nost\ns_waitcnt lgkmcnt(0)")
    for m, sr in enumerate((70, 72, 74, 76, 78, 80, 82, 84)): E(f"v_mov_b32 v{8+m}, s{sr}")
    E("v_mov_b32 v7, 0\nds_write_b128 v7, v[8:11]\nds_write_b128 v7, v[12:15] offset:16\nL_nost:")
E("s_waitcnt lgkmcnt(0)\ns_barrier\ns_endpgm")

E("L_helper:")
build_srd(SD, 16, 256)
E(f"s_lshl_b32 s{sA}, s{sW}, 3\ns_or_b32 s{sA}, s{sA}, s{sC}\ns_cmp_lt_u32 s{sA}, 2\ns_cbranch_scc0 L_voted\ns_waitcnt lgkmcnt(0)")
E(f"s_sub_u32 s92, s92, s100\ns_cmp_gt_u32 s92, {P['thr']}\ns_cselect_b32 s{sA}, 0, 1\ns_xor_b32 s{sA}, s{sA}, s{sSIG}\ns_xor_b32 s{sA}, s{sA}, s{sGRP}\ns_and_b32 s{sA}, s{sA}, 1")
E(f"s_lshl_b32 s{sB}, s{sC}, 3\ns_add_u32 s{sB}, s{sB}, 8\ns_lshl_b32 s{sA}, s{sA}, s{sB}\ns_add_u32 s{sA}, s{sA}, 1\nv_mov_b32 v{PL}, s{sA}\ns_mov_b64 exec, 1")
E(f"buffer_atomic_add v{PL}, off, {srd(SD)}, 0 sc1\ns_mov_b64 exec, -1\nL_voted:")
e_dma(0, range(N0, N0 + 1))
if P["pfM"] and P["pfpos"] == 1:
    build_srd(SF, 12, 1 << 20); first_touch(P["pfM"])
e_dma(0, range(N0 + 1, 8))
if P["pfM"] and P["pfpos"] == 2:
    build_srd(SF, 12, 1 << 20); first_touch(P["pfM"])
E(f"v_and_b32 v{TMP}, 1, v{vG}\nv_mul_u32_u24 v{TMP}, 448, v{TMP}")
if P["fullline"]:
    E(f"v_lshrrev_b32 v{TMP+1}, 5, v{vL}\nv_and_b32 v{TMP+2}, 31, v{vL}\nv_lshlrev_b32 v{TMP+2}, 4, v{TMP+2}\nv_lshl_add_u32 v{TMP+2}, v{TMP+1}, 14, v{TMP+2}")
    for t in range(8): E(f"v_mov_b32 v{vD+t}, v{TMP+2}")
    E(f"v_mov_b32 v{TMP}, 0")
for t in range(8): E(f"v_add_u32 v{vD+t}, v{vD+t}, v{TMP}")
build_srd(SF, 12, 1 << 20); build_srd(SO, 14, 32768); build_srd(SWS, 18, 1 << 30)
ce = struct.unpack("<I", struct.pack("<f", (128 ** -0.5) * math.log2(math.e)))[0]
E(f"s_mov_b32 s{sCE}, {ce:#x}\ns_lshl_b32 s{sSC}, s{sGRP}, 11")
E(f"s_lshl_b32 s{sOP}, s{sGRP}, 14\ns_add_u32 s{sOP}, s{sOP}, {OOFF}")
E(f"s_lshl_b32 s{sA}, s{sW}, 12\ns_add_u32 s{sO}, s{sOP}, s{sA}\ns_lshl_b32 s{sA}, s{sC}, 8\ns_add_u32 s{sO}, s{sO}, s{sA}")
E(f"s_lshl_b32 s{sA}, s{sC}, 11\ns_add_u32 s{sOP}, s{sOP}, s{sA}")
E(f"s_and_b32 s{sA}, s{sC}, 6\ns_add_u32 s{sOUT}, s{sHD}, s{sA}\ns_lshl_b32 s{sOUT}, s{sOUT}, 8\ns_and_b32 s{sA}, s{sC}, 1\ns_lshl_b32 s{sA}, s{sA}, 7\ns_add_u32 s{sOUT}, s{sOUT}, s{sA}")
E(f"s_lshl_b32 s{sFS}, s{sW}, 14\ns_cmp_ge_u32 s{sW}, 2\ns_cselect_b32 s{sA}, {L_F2 - 32768}, 0\ns_add_u32 s{sFS}, s{sFS}, s{sA}\ns_mov_b32 s{sA}, s{sFS}")
E(f"v_lshrrev_b32 v{TMP}, 2, v{vJ}\nv_lshl_add_u32 v{TMP}, v{vG}, 3, v{TMP}\nv_and_b32 v{TMP+1}, 1, v{vJ}\nv_lshlrev_b32 v{TMP+1}, 3, v{TMP+1}")
E(f"v_bfe_u32 v{TMP+2}, v{vJ}, 1, 1\nv_lshl_add_u32 v{TMP+1}, v{TMP+2}, 2, v{TMP+1}")
for hh in range(2):
    if hh: E(f"v_add_u32 v{TMP}, 4, v{TMP}")
    E(f"v_and_b32 v{TMP+2}, 15, v{TMP}\nv_xor_b32 v{TMP+2}, v{TMP+2}, v{TMP+1}\nv_lshlrev_b32 v{TMP+2}, 4, v{TMP+2}\nv_lshl_add_u32 v{TMP+2}, v{TMP}, 9, v{TMP+2}")
    E(f"v_add_u32 v{vFA+hh}, s{sA}, v{TMP+2}")
E(f"v_and_b32 v{TMP}, 1, v{vJ}\nv_lshlrev_b32 v{TMP+1}, 20, v{TMP}\nv_lshrrev_b32 v{TMP+2}, 1, v{vJ}\nv_lshl_add_u32 v{TMP+1}, v{TMP+2}, 8, v{TMP+1}\nv_lshl_add_u32 v{vSC}, v{vG}, 5, v{TMP+1}")
E(f"s_mov_b32 s{sSELA}, 0x0c0c0400\ns_mov_b32 s{sSELB}, 0x04000c0c\ns_mov_b32 s{sMASK}, 0xff")
E(f"s_lshl_b32 s{sA}, s{sW}, 10\ns_add_u32 s{sA}, s{sA}, {L_WA}\nv_lshlrev_b32 v{TMP}, 6, v{TMP}\nv_lshl_add_u32 v{TMP}, v{vG}, 4, v{TMP}\nv_add_u32 v{vWW}, s{sA}, v{TMP}")
E(f"v_lshlrev_b32 v{TMP}, 6, v{vL}\nv_add_u32 v{vSCR}, {L_SC}, v{TMP}\nv_lshlrev_b32 v{vL4}, 2, v{vL}")
E(f"v_lshlrev_b32 v{TMP}, 4, v{vL}\nv_add_u32 v{vPB}, {L_PB}, v{TMP}")
E(f"v_add_u32 v{vBW}, {L_PB}, v{vL4}\nv_and_b32 v{TMP}, 31, v{vL}\nv_lshlrev_b32 v{TMP}, 4, v{TMP}\nv_add_u32 v{vBR}, {L_PB}, v{TMP}")
E(f"s_lshl_b32 s{sA}, s{sW}, 11\ns_add_u32 s{sA}, s{sA}, {L_OL}\nv_add_u32 v{vOR}, s{sA}, v{TMP}")
E(f"v_and_b32 v{TMP}, 1, v{vG}\nv_lshlrev_b32 v{TMP+1}, 20, v{TMP}\nv_lshl_add_u32 v{vBS}, v{vJ}, 4, v{TMP+1}")
E(f"v_lshlrev_b32 v{TMP+1}, 11, v{TMP}\nv_lshl_add_u32 v{vOS}, v{vJ}, 4, v{TMP+1}")
E(f"v_lshlrev_b32 v{TMP+1}, 4, v{vJ}\nv_lshl_add_u32 v{vOP}, v{vG}, 8, v{TMP+1}\nv_lshlrev_b32 v{vOUT}, 3, v{vJ}")
E(f"v_lshl_add_u32 v{vOUT}, v{TMP}, 2, v{vOUT}\nv_lshrrev_b32 v{TMP}, 1, v{vG}\nv_lshl_add_u32 v{vOUT}, v{TMP}, 1, v{vOUT}")
def touch(sr, row0, col, nw):
    E(f"s_cmp_lt_u32 s{sW}, {nw}\ns_cbranch_scc0 L_t{sr}_{row0}_{col}")
    if nw == 2: E(f"s_lshl_b32 s{sA}, s{sGRP}, 1\ns_add_u32 s{sA}, s{sA}, s{sW}\ns_lshl_b32 s{sA}, s{sA}, 14")
    else: E(f"s_lshl_b32 s{sA}, s{sGRP}, 14\ns_lshl_b32 s{sB}, s{sW}, 10\ns_add_u32 s{sA}, s{sA}, s{sB}")
    E(f"s_and_b32 s{sB}, s{sC}, 3\ns_lshl_b32 s{sB}, s{sB}, 12\ns_add_u32 s{sA}, s{sA}, s{sB}\ns_add_u32 s{sA}, s{sA}, {row0*16384 + col}\nv_lshlrev_b32 v{TMP+8}, 4, v{vL}")
    E(f"buffer_load_dwordx4 {vr(PL+8)}, v{TMP+8}, {srd(sr)}, s{sA} offen {P['tpol']}\nL_t{sr}_{row0}_{col}:")
def split():
    E(f"s_mov_b32 s{sSPIN}, {min(P['spin'], 1 << 14)}\nL_tally:")
    E(f"buffer_load_dword v{vRDY}, off, {srd(SD)}, 0 sc1\ns_waitcnt vmcnt(0)\nv_readfirstlane_b32 s{sSIG}, v{vRDY}")
    E(f"s_and_b32 s{sA}, s{sSIG}, 0xff\ns_cmp_eq_u32 s{sA}, 64\ns_cbranch_scc1 L_tallied\ns_sleep 16\ns_sub_u32 s{sSPIN}, s{sSPIN}, 1\ns_cbranch_scc0 L_tally\nL_tallied:")
    h.done = h.n
    if P["force"] >= 0: E(f"s_mov_b32 s{sSIG}, {(P['force'] & 1) * 0x2000 + (P['force'] >> 1) * 0x200000}")
    E(f"s_lshr_b32 s{sB}, s{sC}, 2\ns_xor_b32 s{sB}, s{sB}, s{sGRP}\ns_and_b32 s{sB}, s{sB}, 1")
    for n, dst in ((0, sKD), (1, sVD)):
        E(f"s_bfe_u32 s{sA}, s{sSIG}, {0x80000 + 8 + 8*n:#x}\ns_cmp_gt_u32 s{sA}, 16\ns_cselect_b32 s{sA}, 1, 0\ns_xor_b32 s{dst}, s{sA}, s{sB}")
        E(f"s_lshl_b32 s{sA}, s{dst}, 13\nv_mov_b32 v{TMP+n}, s{sA}")
    E(f"v_mov_b32 v{TMP+2}, {L_SG}\nds_write_b64 v{TMP+2}, v[{TMP}:{TMP+1}]")
    sh = 9 if P["fullline"] else 6
    E(f"s_lshl_b32 s{sA}, s{sKD}, {sh}\ns_add_u32 s{sT}, s{sE0}, s{sA}\ns_lshl_b32 s{sA}, s{sVD}, {sh}\ns_add_u32 s{sF0}, s{sF0}, s{sA}\ns_lshl_b32 s{sFB}, s{sW}, 10\ns_add_u32 s{sFB}, s{sFB}, s{sF0}\ns_waitcnt lgkmcnt(0)")
NB = P["NB"] if P["early"] else 0
def nonce_load():
    E(f"s_lshl_b32 s{sB}, s{sGRP}, 14\ns_add_u32 s{sB}, s{sB}, {OOFF}")
    h.issue(f"buffer_load_dwordx4 {vr(PL)}, off, {srd(SWS)}, s{sB} sc1 nt", "old")
def nonce_make():
    h.wait("old")
    E(f"v_perm_b32 v{TMP}, v{PL+1}, v{PL}, s{sSELA}\nv_perm_b32 v{TMP+1}, v{PL+3}, v{PL+2}, s{sSELB}\nv_or_b32 v{TMP}, v{TMP}, v{TMP+1}")
    E(f"v_readfirstlane_b32 s{sA}, v{TMP}")
    E(f"s_mul_i32 s{sNON}, s{sA}, 0x9e3779b1\ns_add_u32 s{sNON}, s{sNON}, 0x7f4a7c15\ns_lshr_b32 s{sB}, s{sNON}, 15\ns_xor_b32 s{sNON}, s{sNON}, s{sB}")
    E(f"s_xor_b32 s{sB}, s{sNON}, 2\ns_cmp_eq_u32 s{sNON}, s{sA}\ns_cselect_b32 s{sNON}, s{sB}, s{sNON}")
    E(f"v_mov_b32 v{vRDY}, s{sNON}")
    E(f"v_and_b32 v{TMP}, 3, v{vL}\nv_lshlrev_b32 v{TMP}, 3, v{TMP}\nv_lshrrev_b32 v{vTG1}, v{TMP}, v{vRDY}")
    for m in range(4): E(f"v_lshrrev_b32 v{vTG+m}, {8*m}, v{vRDY}")
def tag_check(r, n):
    for m in range(n):
        E(f"v_perm_b32 v{TMP+2*m}, v{r+4*m+1}, v{r+4*m}, s{sSELA}\nv_perm_b32 v{TMP+2*m+1}, v{r+4*m+3}, v{r+4*m+2}, s{sSELB}")
    for m in range(n): E(f"v_or_b32 v{TMP+2*m}, v{TMP+2*m}, v{TMP+2*m+1}")
    for m in range(n): E(f"v_xor_b32 v{TMP+2*m}, s{sNON}, v{TMP+2*m}")
    for m in range(1, n): E(f"v_or_b32 v{TMP}, v{TMP}, v{TMP+2*m}")
    E(f"v_cmp_ne_u32 vcc, 0, v{TMP}")
def untag(r, n):
    for m in range(n): E(f"v_and_b32 v{r+m}, 0xffffff00, v{r+m}")
def publish(ev):
    E(f"s_cmp_eq_u32 s{sW}, 3\ns_cbranch_scc0 L_pub{ev}")
    for n in range(2):
        for m in range(4): E(f"ds_read_b128 {vr(S+m*4)}, v{vSCR} offset:{n*4096 + m*16}")
        E("s_waitcnt lgkmcnt(0)")
        for st in (8, 4, 2):
            for m in range(st): E(f"v_add_f32 v{S+m}, v{S+m}, v{S+m+st}")
        E(f"v_add_f32 v{WT+n}, v{S}, v{S+1}\nv_bfi_b32 v{WT+n}, s{sMASK}, v{vTG1}, v{WT+n}")
    E(f"ds_write_b32 v{vBW}, v{WT}\nds_write_b32 v{vBW}, v{WT+1} offset:256\ns_waitcnt lgkmcnt(0)\nds_read_b128 {vr(S)}, v{vBR}")
    E(f"s_lshl_b32 s{sA}, s{sC}, 8\ns_add_u32 s{sA}, s{sA}, s{sSC}\ns_add_u32 s{sA}, s{sA}, {ev * 65536}\ns_waitcnt lgkmcnt(0)\ns_mov_b32 exec_hi, 0")
    if "s" not in P["nosync"]: E(f"buffer_store_dwordx4 {vr(S)}, v{vBS}, {srd(SWS)}, s{sA} offen sc1")
    E(f"s_mov_b64 exec, -1\nL_pub{ev}:")
def f_loads(ks, ts):
    for t in ts:
        if P["noF"]: continue
        pat = P[f"F{ks}"]; h.window(int(pat[t % len(pat)]))
        E(f"s_add_u32 m0, s{sFS}, {t*1024}\ns_add_u32 s{sA}, s{sFB}, {ks*524288 + t*32768}")
        h.issue(f"buffer_load_dwordx4 v{vD+(t&7)}, {srd(SF)}, s{sA} offen {P['fpol']} lds")
def f_reads(ks):
    h.drain()
    for w_ in range(4):
        for hh in range(2): E(f"v_xor_b32 v{TMP+hh}, {w_*16}, v{vFA+hh}")
        for bb in range(2):
            for hb in range(2):
                for hh in range(2):
                    E(f"ds_read_b64_tr_b16 {ar(aFT + (((bb*4+w_)*2+hb)*2+ks)*4 + hh*2, 2)}, v{TMP+hh} offset:{bb*256 + hb*8}")
        E("s_waitcnt lgkmcnt(0)")
def xg(op, r):
    for sw in ("v_permlane32_swap_b32", "v_permlane16_swap_b32"):
        E(f"v_mov_b32 v{TMP+1}, v{r}\n{sw} v{TMP+1}, v{r}\n{op} v{r}, v{TMP+1}, v{r}")
def softmax(ev):
    E(f"s_cmp_eq_u32 s{sW}, 0\ns_cbranch_scc0 L_sm{ev}")
    if "l" not in P["nosync"]:
        E(f"s_add_u32 s{sA}, s{sSC}, {ev*65536}\ns_mov_b32 s{sSPIN}, {P['spin']}\nL_sc{ev}:")
        for m, o in enumerate((0, 16, 128, 144)): E(f"buffer_load_dwordx4 {vr(S+m*4)}, v{vSC}, {srd(SWS)}, s{sA} offen offset:{o} sc1")
        E("s_waitcnt vmcnt(0)")
        tag_check(S, 4)
        E(f"s_cbranch_vccz L_sc_ok{ev}\ns_sleep 8\ns_sub_u32 s{sSPIN}, s{sSPIN}, 1\ns_cbranch_scc0 L_sc{ev}\nL_sc_ok{ev}:")
    untag(S, 16)
    for ctl in ("quad_perm:[2,3,0,1]", "row_ror:4", "row_ror:8"):
        for m in range(16): E(f"v_add_f32_dpp v{S+m}, v{S+m}, v{S+m} {ctl} row_mask:0xf bank_mask:0xf")
    maxtree("v_max3_f32", TMP + 2, range(S, S + 16)); xg("v_max_f32", TMP + 2)
    E(f"v_mul_f32 v{TMP+2}, s{sCE}, v{TMP+2}")
    for m in range(16): E(f"v_fma_f32 v{S+m}, v{S+m}, s{sCE}, -v{TMP+2}")
    for m in range(16): E(f"v_exp_f32 v{S+m}, v{S+m}")
    for m in range(4): E(f"v_add_f32 v{TMP+4+m}, v{S+m}, v{S+m+4}")
    for m in range(4): E(f"v_add_f32 v{TMP+8+m}, v{S+m+8}, v{S+m+12}")
    for m in range(4): E(f"v_add_f32 v{TMP+4+m}, v{TMP+4+m}, v{TMP+8+m}")
    E(f"v_add_f32 v{TMP+4}, v{TMP+4}, v{TMP+5}\nv_add_f32 v{TMP+6}, v{TMP+6}, v{TMP+7}\nv_add_f32 v{TMP+3}, v{TMP+4}, v{TMP+6}")
    xg("v_add_f32", TMP + 3)
    E(f"v_rcp_f32 v{TMP+3}, v{TMP+3}")
    for m in range(16): E(f"v_mul_f32 v{S+m}, v{S+m}, v{TMP+3}")
    for m in range(8): E(f"v_cvt_pk_bf16_f32 v{PB+m}, v{S+2*m}, v{S+2*m+1}")
    E(f"ds_write_b128 v{vPB}, {vr(PB)}\nds_write_b128 v{vPB}, {vr(PB+4)} offset:1024\ns_waitcnt lgkmcnt(0)\nL_sm{ev}:")
def weights(ev):
    E(f"ds_read_b128 {vr(PB)}, v{vPB}\nds_read_b128 {vr(PB+4)}, v{vPB} offset:1024")
    E("s_mov_b32 s100, 0x00030003\ns_mov_b32 s101, 0x00030003\ns_waitcnt lgkmcnt(0)")
    for bb in range(2):
        for w_ in range(4):
            for ks in range(2):
                for hb in range(2):
                    c_ = "0" if ks == 0 else vr(DD + hb * 4)
                    E(f"v_mfma_f32_16x16x32_bf16 {vr(DD+hb*4)}, {ar(aFT + (((bb*4+w_)*2+hb)*2+ks)*4)}, {vr(PB+ks*4)}, {c_}")
            for kk in range(4): E(f"v_cvt_pk_bf16_f32 v{WT+kk}, v{DD+2*kk}, v{DD+2*kk+1}")
            E(f"s_mov_b64 exec, s[100:101]\nds_write_b128 v{vWW}, {vr(WT)} offset:{ev*4096 + bb*512 + w_*128}\ns_mov_b64 exec, -1")
    E("s_waitcnt lgkmcnt(0)")
for k in BARS:
    if k in EBAR:
        B = EBAR.index(k)
        h.wait(("D", B))
        E("s_barrier")
        if B == 0 and P["tE"]: touch(SE, 0, 1024, 2)
        if B == P["pfLb"] and P["pfL"]: first_touch(P["pfL"])
        if B == 0: split()
        if B == 1 and P["tE"]: touch(SE, 0, 3072, 2)
        if B == 2 and P["tF"]: touch(SF, 0, 0, 4)
        if B == 1: nonce_load()
        if B == 2: nonce_make()
        if 0 < B < 3: e_dma(B + 1)
        if B == 3: f_loads(0, range(NB))
    elif k in SBAR:
        E("s_barrier"); e_dma(1)
        if P["tE"]: touch(SE, 0, 2048, 2)
    elif k in UBAR:
        E("s_barrier")
        publish(UBAR.index(k))
        if k == UBAR[0]:
            f_loads(0, range(NB, 12))
            if P["tF"]: touch(SF, 32, 0, 4)
            f_loads(0, range(12, 16)); f_reads(0)
            if P["smpos"]: softmax(0)
            f_loads(1, range(16)); f_reads(1)
            if not P["smpos"]: softmax(0)
    elif k in PBAR:
        E("s_barrier"); weights(PBAR.index(k))
    elif k == XBAR[0]:
        E("s_barrier"); softmax(1)
    else:
        E("s_barrier")
E("s_barrier")
for w_ in range(4): E(f"ds_read_b128 {vr(S+w_*4)}, v{vOR} offset:{w_*512}")
E("s_mov_b32 exec_hi, 0\ns_waitcnt lgkmcnt(2)")
for m in range(4): E(f"v_add_f32 v{S+m}, v{S+m}, v{S+4+m}")
E("s_waitcnt lgkmcnt(0)")
for m in range(4): E(f"v_add_f32 v{S+8+m}, v{S+8+m}, v{S+12+m}")
for m in range(4): E(f"v_add_f32 v{S+m}, v{S+m}, v{S+8+m}")
for m in range(4): E(f"v_bfi_b32 v{S+m}, s{sMASK}, v{vTG+m}, v{S+m}")
E(f"buffer_store_dwordx4 {vr(S)}, v{vOS}, {srd(SWS)}, s{sO} offen sc1\ns_mov_b64 exec, -1")
E(f"s_cmp_eq_u32 s{sW}, 0\ns_cbranch_scc0 L_done")
if P["stamps"]: E("s_memrealtime s[86:87]")
E(f"s_mov_b32 s{sSPIN}, {P['spin']}\nL_poll:")
E(f"buffer_load_dwordx4 {vr(PL)}, v{vOP}, {srd(SWS)}, s{sOP} offen sc1")
E(f"buffer_load_dwordx4 {vr(PL+4)}, v{vOP}, {srd(SWS)}, s{sOP} offen offset:1024 sc1")
E("s_waitcnt vmcnt(0)")
tag_check(PL, 2)
E(f"s_sub_u32 s{sSPIN}, s{sSPIN}, 1\ns_cbranch_scc1 L_got\ns_cbranch_vccnz L_poll\nL_got:")
untag(PL, 8)
for m in range(4): E(f"v_add_f32 v{PL+m}, v{PL+m}, v{PL+4+m}")
E(f"v_permlane32_swap_b32 v{PL}, v{PL+1}\nv_permlane32_swap_b32 v{PL+2}, v{PL+3}")
E(f"v_add_f32 v{PL}, v{PL}, v{PL+1}\nv_add_f32 v{PL+2}, v{PL+2}, v{PL+3}")
E(f"v_permlane16_swap_b32 v{PL}, v{PL+2}\nv_add_f32 v{PL}, v{PL}, v{PL+2}\nv_cvt_pk_bf16_f32 v{PL+4}, v{PL}, v{PL}")
if P["fixt"]:
    E(f"L_fix:\ns_memrealtime s[92:93]\ns_waitcnt lgkmcnt(0)\ns_sub_u32 s92, s92, s90\ns_cmp_lt_u32 s92, {P['fixt']}\ns_cbranch_scc1 L_fix")
E(f"buffer_store_short v{PL+4}, v{vOUT}, {srd(SO)}, s{sOUT} offen")
if P["stamps"]:
    E("s_waitcnt vmcnt(0)\ns_memrealtime s[92:93]\ns_getreg_b32 s72, hwreg(HW_REG_XCC_ID)")
    E(f"v_mov_b32 v{TMP}, 0\nds_read_b128 v[56:59], v{TMP}\nds_read_b128 v[60:63], v{TMP} offset:16\ns_waitcnt lgkmcnt(0)")
    E("s_sub_u32 s86, s86, s90")
    for m in range(8): E(f"v_subrev_u32 v{56+m}, s90, v{56+m}")
    for m, sr in enumerate((90, 91, 92, 93, 72, 84, 86, sSIG)): E(f"v_mov_b32 v{48+m}, s{sr}")
    E("v_mov_b32 v53, v63")
    E(f"s_lshl_b32 s{sA}, s2, 6\ns_add_u32 s{sA}, s{sA}, 0x20000000\ns_mov_b64 exec, 1")
    for m in range(4): E(f"buffer_store_dwordx4 {vr(48+m*4)}, off, {srd(SWS)}, s{sA} offset:{m*16}")
E("L_done:\ns_endpgm")
E.raw('.section .rodata,"a"\n.p2align 6')
E.raw(f""".amdhsa_kernel {NAME}
  .amdhsa_next_free_vgpr 256
  .amdhsa_next_free_sgpr 102
  .amdhsa_accum_offset 128
  .amdhsa_group_segment_fixed_size 0
  .amdhsa_float_denorm_mode_32 3
  .amdhsa_kernarg_size 64
  .amdhsa_user_sgpr_count 2
  .amdhsa_user_sgpr_kernarg_segment_ptr 1
  .amdhsa_system_sgpr_workgroup_id_x 1
.end_amdhsa_kernel""")
open(out, "w").write(E.text())
print(out, "instructions", E.count, "auto nops", E.nops, "held", HELD, file=sys.stderr)
```

```python
import sys, struct, math
from emit import Emitter

P = dict(X=5, XE=10, NE=4, XS=5, XR="", first=5, stamps=0, fine="", spin=1 << 20, prio=1,
         D0="8", D1="2", D2="12", D3="12", D4="2", F0="122", F1="122", NB=1, early=1, smpos=1, PB0=246, PB1=352, SM1=320, SB=20, EB="12,44,76,108", noE=0, noF=0, nosync="",
         jit=0, force=-1, thr=64, fixt=0, fullline=0, kvpol="nt", efpol="", tE=0, tF=0, tpol="nt", pfM="EF", pfL="", pfLb=1, e0pol="", pfpos=2, epol="", fpol="", XP="5554", XE1=7, NE1=0, smix=1, lead=0, LB=292, stpol="sc1", ldpol="sc1", wsv=1, kst=0, noq=0, noprobe=0, XB="", pfS="", e0late=1, NG=32, GM=0xffffffff)
out = sys.argv[1]
for a in sys.argv[2:]:
    k, v = a.split("="); P[k] = int(v, 0) if isinstance(P[k], int) else v
STP, LDP = P["stpol"].replace("+", " "), P["ldpol"].replace("+", " ")
NV = 3 if P["wsv"] else 2
NAME = "standalone__low_rank_proj_linformer__decode_kernel"
E = Emitter()

def srd(n): return f"s[{n}:{n+3}]"
def vr(n, k=4): return f"v[{n}:{n+k-1}]"
def ar(n, k=4): return f"a[{n}:{n+k-1}]"
SK, SV, SE, SF, SQ, SO, SD, SWS = 20, 24, 28, 32, 36, 40, 44, 48
sW, sGRP, sC, sKV, sT, sA, sB, sSELL, sSELH, sCE, sE0, sM, sSC, sO, sOP, sOUT, sSPIN, sT2 = 3, *range(52, 69)
sKD, sVD, sHD, sFS, sFB = 69, 88, 89, 70, 71
sNON, sSELA, sSELB, sMASK, sSIG, sF0 = 94, 95, 96, 97, 98, 99
HB = 0x100000; OOFF = 0x40000
L_SC = 65536; L_OL = L_SC + 8192; L_WA = L_OL + 8192; L_PB = L_WA + 8192; L_SG = L_PB + 2048; L_F2 = L_SG + 1024; LDS_BYTES = L_F2 + 65536
L_ST = L_OL
TOFF = 0xF0000; sTOT = 74
XOFF = 0xC0000

class Q:
    def __init__(s): s.n = 0; s.done = 0; s.tag = {}
    def issue(s, text, tag=None):
        E(text); s.n += 1
        if tag is not None: s.tag[tag] = s.n
    def wait(s, tag):
        idx = s.tag[tag]
        if idx <= s.done: return
        assert s.n - idx <= 63
        E(f"s_waitcnt vmcnt({s.n - idx})"); s.done = idx
    def window(s, w):
        if w and s.n - s.done >= w: E(f"s_waitcnt vmcnt({w-1})"); s.done = s.n - (w - 1)
    def drain(s): E("s_waitcnt vmcnt(0)"); s.done = s.n
def build_srd(n, lo, size):
    E(f"s_mov_b32 s{n}, s{lo}\ns_mov_b32 s{n+1}, s{lo+1}\ns_mov_b32 s{n+2}, {size}\ns_mov_b32 s{n+3}, 0x00020000")
def maxtree(op, dst, regsl):
    r = list(regsl)
    E(f"{op} v{dst}, v{r[0]}, v{r[1]}, v{r[2]}"); r = r[3:]
    while len(r) >= 2: E(f"{op} v{dst}, v{dst}, v{r[0]}, v{r[1]}"); r = r[2:]
    if r: E(f"{op} v{dst}, v{dst}, v{r[0]}, v{r[0]}")

def tile(T):
    if T < 32: return (T >> 4) * 2 + ((T >> 1) & 1), ((T >> 2) & 3) * 2 + (T & 1)
    return (T >> 3) & 3, T & 7

EBAR = [int(x) for x in P["EB"].split(",")]
SBAR = [P["SB"]]
EBAR.append(130)
UBAR = [130, 258]
PBAR = [P["PB0"], P["PB1"]]
XBAR = [P["SM1"], 384]
LBAR = [P["LB"]] if P["lead"] else []
BARS = sorted(set(EBAR + SBAR + UBAR + PBAR + XBAR + LBAR + [int(x) for x in P["XB"].split(",") if x]))
def fixed(T): return T < 4
HELD = [T for T in range(0, 16, 4) if EBAR[T >> 2] + 4 > 8 * (T + 1)]

E.raw(f"; @launch grid=(256,1,1) block=(512,1,1) lds={LDS_BYTES}")
E.raw('.amdgcn_target "amdgcn-amd-amdhsa--gfx950"\n.text')
E.raw(f".globl {NAME}\n.p2align 8\n.type {NAME},@function\n{NAME}:")
E("s_load_dwordx16 s[4:19], s[0:1], 0")
if P["stamps"] or P["fixt"]: E("s_memrealtime s[90:91]")
E("s_cmp_ge_u32 s2, 256\ns_cbranch_scc1 L_done")
vL, vJ, vG = 0, 126, 127
E(f"v_lshrrev_b32 v1, 6, v0\nv_and_b32 v{vL}, 63, v0")
E(f"v_readfirstlane_b32 s{sW}, v1")
E(f"v_and_b32 v{vJ}, 15, v{vL}\nv_lshrrev_b32 v{vG}, 4, v{vL}")
E(f"s_lshr_b32 s{sGRP}, s2, 3\ns_and_b32 s{sC}, s2, 7")
E(f"s_lshr_b32 s{sHD}, s{sGRP}, 1\ns_lshl_b32 s{sHD}, s{sHD}, 3\ns_and_b32 s{sA}, s{sGRP}, 1\ns_add_u32 s{sHD}, s{sHD}, s{sA}")
E(f"s_lshl_b32 s{sKV}, s{sHD}, 21\ns_and_b32 s{sB}, s{sC}, 3\ns_lshl_b32 s{sA}, s{sB}, 19\ns_add_u32 s{sKV}, s{sKV}, s{sA}")
if P["jit"]:
    E(f"s_mul_i32 s{sA}, s2, 37\ns_mul_i32 s{sT}, s{sW}, {P['jit'] & 1}\ns_add_u32 s{sA}, s{sA}, s{sT}\ns_lshr_b32 s{sA}, s{sA}, 2\ns_and_b32 s{sA}, s{sA}, 15\ns_cmp_lt_u32 s{sA}, 12\ns_cbranch_scc1 L_nojit")
    E(f"s_sub_u32 s{sA}, s{sA}, 11\ns_mul_i32 s{sA}, s{sA}, {P['jit']}\nL_jit:\ns_sleep 64\ns_sub_u32 s{sA}, s{sA}, 1\ns_cmp_lg_u32 s{sA}, 0\ns_cbranch_scc1 L_jit\nL_nojit:")
E(f"s_cmp_ge_u32 s{sW}, 4\ns_cbranch_scc0 L_stream")

vD, vFA, vSC, vSCR, vL4, vOR, vOS, vOP, vOUT, vRDY, vWW, vX, vPB, vBW, vBR, vBS = 4, 12, *range(16, 30)
vTG = 112
S, PB, DD, WT, TMP, PL = 32, 48, 56, 64, 68, 80
aFT = 0
h = Q()
E(f"s_sub_u32 s{sW}, s{sW}, 4")
def stage_addr(mix, pair):
    b1 = 6 if mix else 5
    def spread(x): return (x & 1) * 16 + (((x >> 1) & 1) << b1) + (x >> 2) * 128
    E(f"v_lshrrev_b32 v{TMP+1}, 5, v{vL}\nv_xor_b32 v{TMP}, v{vJ}, v{TMP+1}\nv_and_b32 v{TMP+2}, 1, v{TMP}\nv_lshlrev_b32 v{TMP+2}, 4, v{TMP+2}")
    E(f"v_bfe_u32 v{TMP+3}, v{TMP}, 1, 1\nv_lshl_add_u32 v{TMP+2}, v{TMP+3}, {b1}, v{TMP+2}")
    E(f"v_lshrrev_b32 v{TMP}, 2, v{TMP}\nv_lshl_add_u32 v{TMP+2}, v{TMP}, 7, v{TMP+2}\nv_and_b32 v{TMP}, 1, v{vG}\nv_lshl_add_u32 v{TMP+2}, v{TMP}, {pair.bit_length()-1}, v{TMP+2}")
    E(f"v_lshl_add_u32 v{vD}, v{TMP+1}, 14, v{TMP+2}")
    for t in range(1, 8): E(f"v_xor_b32 v{vD+t}, {spread(2*t)}, v{vD}")
stage_addr(P["smix"], 32 if P["smix"] else 64)
E(f"s_lshl_b32 s{sF0}, s{sB}, 12\ns_lshl_b32 s{sA}, s{sW}, 18\ns_add_u32 s{sE0}, s{sF0}, s{sA}\ns_lshl_b32 s{sM}, s{sW}, 13")
E(f"s_lshr_b32 s{sT}, s{sC}, 2\ns_lshl_b32 s{sT}, s{sT}, 9\ns_add_u32 s{sT}, s{sT}, s{sE0}")
E(f"s_mov_b32 s{SE+2}, {1<<20}\ns_mov_b32 s{SE+3}, 0x00020000\ns_mov_b32 s{SK+2}, {1<<28}\ns_mov_b32 s{SK+3}, 0x00020000")
E("s_waitcnt lgkmcnt(0)")
E(f"s_mov_b32 s{SE}, s10\ns_mov_b32 s{SE+1}, s11")
E(f"s_cmp_lt_u32 s{sC}, {NV}\ns_cbranch_scc0 L_noprobe\ns_cmp_eq_u32 s{sW}, 0\ns_cbranch_scc0 L_probed")
E(f"s_cmp_eq_u32 s{sC}, 0\ns_cselect_b32 s{SK}, s6, s8\ns_cselect_b32 s{SK+1}, s7, s9\ns_add_u32 s{sA}, s{sKV}, 0x70000")
if P["wsv"]: E(f"s_cmp_eq_u32 s{sC}, 2\ns_cselect_b32 s{SK}, s18, s{SK}\ns_cselect_b32 s{SK+1}, s19, s{SK+1}\ns_cselect_b32 s{sA}, 0x180000, s{sA}")
E(f"s_bfe_u32 s{sSIG}, s{sGRP}, 0x10001\ns_lshl_b32 s{sB}, s{sSIG}, 13\ns_add_u32 s{sA}, s{sA}, s{sB}\ns_lshl_b32 s{sB}, s{sGRP}, 7")
E(f"s_add_u32 s{sA}, s{sA}, s{sB}\ns_xor_b32 s{sB}, s{sA}, 0x2000\ns_mov_b64 exec, 1")
E.raw("  .p2align 6")
if P["noprobe"]: E("s_barrier\ns_barrier")
else: E(f"s_barrier\nbuffer_load_dword v{PL}, off, {srd(SK)}, s{sA} nt\nbuffer_load_dword v{PL+1}, off, {srd(SK)}, s{sB} nt\ns_barrier")
E("s_waitcnt vmcnt(1)\ns_memtime s[100:101]\ns_waitcnt vmcnt(0)\ns_memtime s[92:93]\ns_mov_b64 exec, -1\ns_branch L_noprobe")
E("L_probed:\ns_barrier\ns_barrier\nL_noprobe:")
def e_dma(B, ts=range(8)):
    for t in ts:
        if P["noE"]: h.tag[("D", B)] = 0; continue
        pat = P[f"D{B}"]; h.window(int(pat[t % len(pat)]))
        E(f"s_add_u32 m0, s{sM}, {(B & 1) * 32768 + t * 1024}")
        E(f"s_add_u32 s{sA}, s{sT}, {t * 32768 + (B & 3) * 1024}")
        h.issue(f"buffer_load_dwordx4 v{vD+t}, {srd(SE)}, s{sA} offen {P['epol' if B else 'e0pol']} lds", ("D", B))
def first_touch(which):
    E(f"s_lshl_b32 s{sA}, s2, 12\ns_lshl_b32 s{sB}, s{sW}, 10\ns_add_u32 s{sA}, s{sA}, s{sB}\nv_lshlrev_b32 v{TMP+8}, 4, v{vL}")
    if "E" in which: E(f"buffer_load_dwordx4 {vr(PL+8)}, v{TMP+8}, {srd(SE)}, s{sA} offen")
    if "F" in which: E(f"buffer_load_dwordx4 {vr(PL+12)}, v{TMP+8}, {srd(SF)}, s{sA} offen")
if P["pfM"] and P["pfpos"] == 0:
    build_srd(SF, 12, 1 << 20); first_touch(P["pfM"])
N0 = int(P["D0"][0]) or 8
if P["e0late"]:
    build_srd(SWS, 18, 1 << 30)
    E(f"s_lshl_b32 s{sB}, s{sGRP}, 14\ns_add_u32 s{sB}, s{sB}, {OOFF}")
    h.issue(f"buffer_load_dwordx4 {vr(PL+4)}, off, {srd(SWS)}, s{sB} sc1 nt", "old")
else: e_dma(0, range(N0))
E("s_branch L_helper")

E("L_stream:")
vKV, vEA, vSCW, vOW, vWA, vQ = 1, 2, 3, 4, 5, 6
RING, NSLOT = 8, 12
VBA, VBB, WA = 56, 88, 120
TT, TBO, ACK2, TBE, ACK1 = 56, 64, 68, 88, 92
def TB(T): return TBO if T & 1 else TBE
def ACK(u): return ACK2 if u & 1 else ACK1
def QR(u): return 84 if u == 3 else 108 + 4 * u
aE, aV = 0, 0
q = Q()
def win(k):
    T = k >> 3
    if T >= 64 - P["NE"]: return P["XE"]
    if T >= 64 - P["NE1"]: return P["XE1"]
    for part in filter(None, P["XR"].split("/")):
        lo, hi, pat = part.split(",")
        if int(lo) <= k < int(hi): return int(pat[k % len(pat)], 16)
    Tn = min(k + P["XS"], 511) >> 3
    if fixed(Tn): return P["XS"]
    if P["XP"]: return int(P["XP"][k % len(P["XP"])], 16)
    return P["X"]
next_load = [0]; based = [0]
def tile_base(T):
    u, b = tile(T)
    if fixed(T): base, off = sKV, u * 4194304 + b * (4096 if P["smix"] else 8192)
    else: base, off = (sKD if T < 32 else sVD), u * 4194304 + b * 65536
    r = sT2 if T & 1 else sT
    E(f"s_add_u32 s{r}, s{base}, {off}" if off else f"s_mov_b32 s{r}, s{base}")
    based[0] = T + 1
def issue_load():
    n = next_load[0]; next_load[0] += 1
    T, i = n >> 3, n & 7
    if based[0] <= T: tile_base(T)
    r = RING + (n % NSLOT) * 4
    q.issue(f"buffer_load_dwordx4 {vr(r)}, v{vKV}, {srd(SK if T < 32 else SV)}, s{sT2 if T & 1 else sT} offen offset:{i*256} {P['kvpol'].replace('+', ' ')}", ("ld", n))
E(f"v_lshlrev_b32 v{vQ}, 4, v{vJ}\nv_and_b32 v7, 1, v{vG}\nv_lshl_add_u32 v{vKV}, v7, 15, v{vQ}\nv_lshrrev_b32 v2, 1, v{vG}\nv_lshl_add_u32 v{vKV}, v2, 14, v{vKV}")
E(f"s_lshl_b32 s{sA}, s{sW}, 11\ns_add_u32 s{sKD}, s{sKV}, s{sA}\ns_lshr_b32 s{sA}, s{sC}, 2\ns_lshl_b32 s{sA}, s{sA}, 16\ns_add_u32 s{sKV}, s{sKD}, s{sA}")
if P["smix"]: E(f"s_lshr_b32 s{sA}, s{sW}, 1\ns_lshl_b32 s{sA}, s{sA}, 12\ns_add_u32 s{sKV}, s{sKV}, s{sA}")
E(f"s_lshl_b32 s{sB}, s{sHD}, 8")
E(f"s_mov_b32 s{SK+2}, {1<<28}\ns_mov_b32 s{SK+3}, 0x00020000\ns_mov_b32 s{SQ+2}, 32768\ns_mov_b32 s{SQ+3}, 0x00020000")
tile_base(0)
E("s_waitcnt lgkmcnt(0)")
E(f"s_mov_b32 s{SK}, s6\ns_mov_b32 s{SK+1}, s7\ns_mov_b32 s{SQ}, s4\ns_mov_b32 s{SQ+1}, s5")
E(f"s_cmp_lt_u32 s{sC}, {NV}\ns_cbranch_scc0 L_go\ns_barrier\ns_barrier\nL_go:")
if P["kst"]: E("s_memrealtime s[80:81]\ns_mov_b32 s82, s90")
for n in range(P["first"]): issue_load()
if P["prio"]: E(f"s_setprio {P['prio']}")
E(f"v_lshlrev_b32 v7, 3, v7\nv_lshl_add_u32 v7, v2, 2, v7\nv_add_u32 v7, s{sW}, v7")
E(f"v_xor_b32 v7, v7, v{vJ}\nv_lshlrev_b32 v7, 4, v7\nv_lshl_add_u32 v{vEA}, v{vJ}, 9, v7")
E(f"s_lshl_b32 s{sA}, s{sW}, 4\ns_add_u32 s{sA}, s{sA}, {L_SC}\nv_lshlrev_b32 v7, 6, v{vJ}\nv_lshl_add_u32 v7, v{vG}, 2, v7\nv_add_u32 v{vSCW}, s{sA}, v7")
E(f"s_lshl_b32 s{sA}, s{sW}, 9\ns_add_u32 s{sA}, s{sA}, {L_OL}\nv_lshlrev_b32 v7, 5, v{vJ}\nv_add_u32 v{vOW}, s{sA}, v7")
E(f"s_lshl_b32 s{sA}, s{sW}, 7\ns_add_u32 s{sA}, s{sA}, {L_WA}\nv_and_b32 v7, 1, v{vJ}\nv_lshlrev_b32 v7, 6, v7\nv_lshl_add_u32 v7, v{vG}, 4, v7\nv_add_u32 v{vWA}, s{sA}, v7")
def q_load(u): q.issue(f"buffer_load_dwordx4 {vr(QR(u))}, v{vQ}, {srd(SQ)}, s{sB} offen offset:{u*512} nt", ("q", u))
if P["noq"]: q.tag[("q", 1)] = 0
else: q_load(0); q_load(1)
build_srd(SV, 8, 1 << 28)
E(f"s_mov_b32 s{sSELL}, 0x05040100\ns_mov_b32 s{sSELH}, 0x07060302\nv_mov_b32 v7, {L_SG}")

def vbuf(T): return VBB if (T & 1) == 0 else VBA
def v_finish(T, es):
    for e in es:
        c_ = "0" if (T & 7) == 0 else ar(aV + e * 4)
        E(f"v_mfma_f32_16x16x32_bf16 {ar(aV+e*4)}, {vr(WA+(T&1)*4)}, {vr(vbuf(T)+e*4)}, {c_}")
def v_epi(u):
    E("s_mov_b64 exec, 0xffff")
    for e in range(8): E(f"ds_write_b32 v{vOW}, a{aV + e*4 + (u & 1)} offset:{u*2048 + e*4}")
    E("s_mov_b64 exec, -1")
def k_epi(u, area=0):
    a = ACK(u)
    for b in range(4): E(f"v_add_f32 v{a+b*4}, v{a+b*4}, v{a+b*4+1}")
    for b in range(4): E(f"v_add_f32 v{a+b*4+2}, v{a+b*4+2}, v{a+b*4+3}")
    for b in range(4): E(f"v_add_f32 v{a+b*4}, v{a+b*4}, v{a+b*4+2}")
    for b in range(4): E(f"ds_write_b32 v{vSCW}, v{a+b*4} offset:{area + (u & 1)*4096 + b*1024}")
last_tile = {tile(T)[0]: T for T in range(32)}
QL = P["first"]
lds_pending = False
for k in range(512):
    T, i = k >> 3, k & 7
    if i == 0: E(f"; ---- tile {T}")
    if P["stamps"] and not P["fine"] and i == 0 and T % 8 == 0 and T: E(f"s_memrealtime s[{70+2*(T//8-1)}:{71+2*(T//8-1)}]")
    q.wait(("ld", k))
    if P["fine"]:
        fs = [int(x) for x in P["fine"].split(",")]
        if k in fs: E(f"s_memrealtime s[{70+2*fs.index(k)}:{71+2*fs.index(k)}]")
    while next_load[0] < min(512, k + win(k) + 1): issue_load()
    assert not (k <= QL and next_load[0] > NSLOT), "ring slot reused before its row was consumed"
    oldest = next_load[0] - 1 - NSLOT
    assert k <= QL or oldest + (0 if oldest < 256 else (oldest & 1) ^ 1) < k
    if k in BARS: E("s_waitcnt lgkmcnt(0)\ns_barrier"); lds_pending = False
    elif lds_pending and (i == 0 or k in (SBAR[0] + 1, 510)): E("s_waitcnt lgkmcnt(0)"); lds_pending = False
    if k == SBAR[0]: E(f"ds_read_b64 v[{WA}:{WA+1}], v7"); lds_pending = True
    if k == SBAR[0] + 1:
        assert based[0] <= 4
        E(f"v_readfirstlane_b32 s{sA}, v{WA+1}\ns_add_u32 s{sVD}, s{sKD}, s{sA}\nv_readfirstlane_b32 s{sA}, v{WA}\ns_add_u32 s{sKD}, s{sKD}, s{sA}")
    if k == QL: q.wait(("q", 1))
    if k == 128: q.wait(("q", 3))
    if i == 0 and 0 < T <= 32:
        for m in range(4): E(f"v_cvt_pk_bf16_f32 v{TB(T-1)+m}, v{TT+2*m}, v{TT+2*m+1}")
    if T > 32 and i in (0, 2, 4, 6): v_finish(T - 1, (i, i + 1))
    if T < 32:
        for kk in ([] if k < QL else range(k + 1) if k == QL else [k]):
            for c4 in range(4):
                E(f"v_dot2_f32_bf16 v{TT+(kk&7)}, v{RING+(kk%NSLOT)*4+c4}, v{QR(tile(T)[0])+c4}, {'0' if c4 == 0 else 'v%d' % (TT+(kk&7))}")
    if i == 0 and 0 < T <= 32:
        for Tf in ([] if T - 1 in HELD else [T - 2, T - 1] if T - 2 in HELD else [T - 1]):
            u, b_ = tile(Tf)
            assert EBAR[b_ >> 1 if Tf < 16 or b_ > 1 else 4] + 4 <= k
            for blk in range(4):
                c_ = "0" if b_ == (2 if u < 2 and not fixed(Tf) else 0) else vr(ACK(u) + blk * 4)
                E(f"v_mfma_f32_16x16x32_bf16 {vr(ACK(u)+blk*4)}, {vr(TB(Tf))}, {ar(aE+(b_*4+blk)*4)}, {c_}")
    for u in range(4):
        if k == 8 * (last_tile[u] + 1) + 1: k_epi(u)
        if u < 2 and k == 16 * u + 17: k_epi(u, L_ST - L_SC)
    if T >= 32 and i & 1:
        r, rp = RING + (k % NSLOT) * 4, RING + ((k - 1) % NSLOT) * 4
        for c4 in range(4):
            E(f"v_perm_b32 v{vbuf(T)+(2*c4)*4+(i>>1)}, v{r+c4}, v{rp+c4}, s{sSELL}")
            E(f"v_perm_b32 v{vbuf(T)+(2*c4+1)*4+(i>>1)}, v{r+c4}, v{rp+c4}, s{sSELH}")
    if T in (40, 48, 56) and i == 7: v_epi((T - 40) >> 3)
    for d in range(4):
        if k - d in EBAR:
            B = EBAR.index(k - d); b0 = d >> 1; lds_pending = True
            for blk in (2 * (d & 1), 2 * (d & 1) + 1):
                E(f"ds_read_b128 {ar(aE + ((2*(B & 3)+b0)*4+blk)*4)}, v{vEA} offset:{(B & 1)*32768 + blk*8192 + b0*256}")
    if T >= 32 and i == 3:
        E(f"ds_read_b128 {vr(WA+(T&1)*4)}, v{vWA} offset:{((T-32)>>4)*4096 + (T&7)*512}"); lds_pending = True
    if k in (104, 106): q_load(2 + (k - 104) // 2)
    if (next_load[0] & 7) >= 4 and based[0] == (next_load[0] >> 3) + 1 and based[0] < 64 and (based[0] != 4 or k > SBAR[0]): tile_base(based[0])
if P["stamps"]: E("s_memrealtime s[84:85]")
v_finish(63, range(8))
v_epi(3)
if P["stamps"]:
    E(f"s_cmp_eq_u32 s{sW}, 0\ns_cbranch_scc0 L_nost\ns_waitcnt lgkmcnt(0)")
    for m, sr in enumerate((70, 72, 74, 76, 78, 80, 82, 84)): E(f"v_mov_b32 v{8+m}, s{sr}")
    E("v_mov_b32 v7, 0\nds_write_b128 v7, v[8:11]\nds_write_b128 v7, v[12:15] offset:16\nL_nost:")
E("s_waitcnt lgkmcnt(0)\ns_barrier\ns_endpgm")

E("L_helper:")
build_srd(SD, 16, 256)
E(f"s_lshl_b32 s{sA}, s{sW}, 3\ns_or_b32 s{sA}, s{sA}, s{sC}\ns_cmp_lt_u32 s{sA}, {NV}\ns_cbranch_scc0 L_voted\ns_waitcnt lgkmcnt(0)")
if P["NG"] < 32: E(f"s_mov_b32 s{sB}, {P['GM']:#x}\ns_bitcmp1_b32 s{sB}, s{sGRP}\ns_cbranch_scc0 L_voted")
E(f"s_sub_u32 s92, s92, s100\ns_cmp_gt_u32 s92, {P['thr']}\ns_cselect_b32 s{sA}, 0, 1\ns_xor_b32 s{sA}, s{sA}, s{sSIG}")
E(f"s_cmp_lt_u32 s{sC}, 2\ns_cselect_b32 s{sB}, s{sGRP}, 0\ns_xor_b32 s{sA}, s{sA}, s{sB}\ns_and_b32 s{sA}, s{sA}, 1")
E(f"s_lshl_b32 s{sB}, s{sC}, 3\ns_add_u32 s{sB}, s{sB}, 8\ns_lshl_b32 s{sA}, s{sA}, s{sB}\ns_add_u32 s{sA}, s{sA}, 1\nv_mov_b32 v{PL}, s{sA}\ns_mov_b64 exec, 1")
E(f"buffer_atomic_add v{PL}, off, {srd(SD)}, 0 sc1\ns_mov_b64 exec, -1\nL_voted:")
if P["e0late"]:
    h.wait("old")
    build_srd(SF, 12, 1 << 20); first_touch(P["pfM"])
    if P["e0late"] == 2: E("s_waitcnt vmcnt(0)")
    e_dma(0)
else:
    e_dma(0, range(N0, min(N0 + 1, 8)))
    if P["pfM"] and P["pfpos"] == 1:
        build_srd(SF, 12, 1 << 20); first_touch(P["pfM"])
    e_dma(0, range(N0 + 1, 8))
    if P["pfM"] and P["pfpos"] == 2:
        build_srd(SF, 12, 1 << 20); first_touch(P["pfM"])
stage_addr(0, 512)
build_srd(SF, 12, 1 << 20); build_srd(SO, 14, 32768); build_srd(SWS, 18, 1 << 30)
ce = struct.unpack("<I", struct.pack("<f", (128 ** -0.5) * math.log2(math.e)))[0]
E(f"s_mov_b32 s{sCE}, {ce:#x}\ns_lshl_b32 s{sSC}, s{sGRP}, 11")
E(f"s_lshl_b32 s{sOP}, s{sGRP}, 14\ns_add_u32 s{sOP}, s{sOP}, {OOFF}")
E(f"s_lshl_b32 s{sA}, s{sW}, 12\ns_add_u32 s{sO}, s{sOP}, s{sA}\ns_lshl_b32 s{sA}, s{sC}, 8\ns_add_u32 s{sO}, s{sO}, s{sA}")
E(f"s_lshl_b32 s{sA}, s{sC}, 11\ns_add_u32 s{sOP}, s{sOP}, s{sA}")
E(f"s_and_b32 s{sA}, s{sC}, 6\ns_add_u32 s{sOUT}, s{sHD}, s{sA}\ns_lshl_b32 s{sOUT}, s{sOUT}, 8\ns_and_b32 s{sA}, s{sC}, 1\ns_lshl_b32 s{sA}, s{sA}, 7\ns_add_u32 s{sOUT}, s{sOUT}, s{sA}")
E(f"s_lshl_b32 s{sFS}, s{sW}, 14\ns_add_u32 s{sFS}, s{sFS}, {L_F2}\ns_mov_b32 s{sA}, s{sFS}")
E(f"v_lshrrev_b32 v{TMP}, 2, v{vJ}\nv_lshl_add_u32 v{TMP}, v{vG}, 3, v{TMP}\nv_and_b32 v{TMP+1}, 1, v{vJ}\nv_lshlrev_b32 v{TMP+1}, 3, v{TMP+1}")
E(f"v_bfe_u32 v{TMP+2}, v{vJ}, 1, 1\nv_lshl_add_u32 v{TMP+1}, v{TMP+2}, 2, v{TMP+1}")
for hh in range(2):
    if hh: E(f"v_add_u32 v{TMP}, 4, v{TMP}")
    E(f"v_and_b32 v{TMP+2}, 15, v{TMP}\nv_xor_b32 v{TMP+2}, v{TMP+2}, v{TMP+1}\nv_lshlrev_b32 v{TMP+2}, 4, v{TMP+2}\nv_lshl_add_u32 v{TMP+2}, v{TMP}, 9, v{TMP+2}")
    E(f"v_add_u32 v{vFA+hh}, s{sA}, v{TMP+2}")
E(f"v_and_b32 v{TMP}, 1, v{vJ}\nv_lshlrev_b32 v{TMP+1}, 20, v{TMP}\nv_lshrrev_b32 v{TMP+2}, 1, v{vJ}\nv_lshl_add_u32 v{TMP+1}, v{TMP+2}, 8, v{TMP+1}\nv_lshl_add_u32 v{vSC}, v{vG}, 5, v{TMP+1}")
if P["lead"]:
    E(f"v_lshlrev_b32 v{TMP+1}, 8, v{TMP}\nv_lshl_add_u32 v{vSC}, v{vG}, 5, v{TMP+1}\ns_lshl_b32 s{sTOT}, s{sGRP}, 10\ns_add_u32 s{sTOT}, s{sTOT}, {TOFF}")
E(f"s_mov_b32 s{sSELA}, 0x0c0c0400\ns_mov_b32 s{sSELB}, 0x04000c0c\ns_mov_b32 s{sMASK}, 0xff")
E(f"s_lshl_b32 s{sA}, s{sW}, 10\ns_add_u32 s{sA}, s{sA}, {L_WA}\nv_lshlrev_b32 v{TMP}, 6, v{TMP}\nv_lshl_add_u32 v{TMP}, v{vG}, 4, v{TMP}\nv_add_u32 v{vWW}, s{sA}, v{TMP}")
E(f"v_lshlrev_b32 v{TMP}, 6, v{vL}\nv_add_u32 v{vSCR}, {L_SC}, v{TMP}\nv_lshlrev_b32 v{vL4}, 2, v{vL}")
E(f"v_lshlrev_b32 v{TMP}, 4, v{vL}\nv_add_u32 v{vPB}, {L_PB}, v{TMP}")
E(f"v_add_u32 v{vBW}, {L_PB}, v{vL4}\nv_and_b32 v{TMP}, 31, v{vL}\nv_lshlrev_b32 v{TMP}, 4, v{TMP}\nv_add_u32 v{vBR}, {L_PB}, v{TMP}\nv_mov_b32 v{vX}, v{TMP}")
E(f"s_lshl_b32 s{sA}, s{sW}, 11\ns_add_u32 s{sA}, s{sA}, {L_OL}\nv_add_u32 v{vOR}, s{sA}, v{TMP}")
E(f"v_and_b32 v{TMP}, 1, v{vG}\nv_lshlrev_b32 v{TMP+1}, 20, v{TMP}\nv_lshl_add_u32 v{vBS}, v{vJ}, 4, v{TMP+1}")
E(f"v_lshlrev_b32 v{TMP+1}, 11, v{TMP}\nv_lshl_add_u32 v{vOS}, v{vJ}, 4, v{TMP+1}")
E(f"v_lshlrev_b32 v{TMP+1}, 4, v{vJ}\nv_lshl_add_u32 v{vOP}, v{vG}, 8, v{TMP+1}\nv_lshlrev_b32 v{vOUT}, 3, v{vJ}")
E(f"v_lshl_add_u32 v{vOUT}, v{TMP}, 2, v{vOUT}\nv_lshrrev_b32 v{TMP}, 1, v{vG}\nv_lshl_add_u32 v{vOUT}, v{TMP}, 1, v{vOUT}")
def touch(sr, row0, col, nw):
    E(f"s_cmp_lt_u32 s{sW}, {nw}\ns_cbranch_scc0 L_t{sr}_{row0}_{col}")
    if nw == 2: E(f"s_lshl_b32 s{sA}, s{sGRP}, 1\ns_add_u32 s{sA}, s{sA}, s{sW}\ns_lshl_b32 s{sA}, s{sA}, 14")
    else: E(f"s_lshl_b32 s{sA}, s{sGRP}, 14\ns_lshl_b32 s{sB}, s{sW}, 10\ns_add_u32 s{sA}, s{sA}, s{sB}")
    E(f"s_and_b32 s{sB}, s{sC}, 3\ns_lshl_b32 s{sB}, s{sB}, 12\ns_add_u32 s{sA}, s{sA}, s{sB}\ns_add_u32 s{sA}, s{sA}, {row0*16384 + col}\nv_lshlrev_b32 v{TMP+8}, 4, v{vL}")
    E(f"buffer_load_dwordx4 {vr(PL+8)}, v{TMP+8}, {srd(sr)}, s{sA} offen {P['tpol']}\nL_t{sr}_{row0}_{col}:")
def slot_touch():
    if "S" in P["pfS"]:
        E(f"s_cmp_eq_u32 s{sW}, 0\ns_cbranch_scc0 L_st0\nv_and_b32 v{TMP}, 1, v{vG}\nv_lshlrev_b32 v{TMP}, 20, v{TMP}\nv_lshrrev_b32 v{TMP+1}, 1, v{vG}\nv_lshl_add_u32 v{TMP}, v{TMP+1}, 16, v{TMP}\nv_lshl_add_u32 v{TMP}, v{vJ}, 4, v{TMP}")
        E(f"s_lshl_b32 s{sA}, s2, 8\nbuffer_load_dwordx4 {vr(PL+16)}, v{TMP}, {srd(SWS)}, s{sA} offen\nL_st0:")
    if "O" in P["pfS"]:
        E(f"s_cmp_ge_u32 s{sW}, 2\ns_cbranch_scc0 L_st1\nv_lshlrev_b32 v{TMP}, 4, v{vL}\ns_lshl_b32 s{sA}, s2, 11\ns_and_b32 s{sB}, s{sW}, 1\ns_lshl_b32 s{sB}, s{sB}, 10\ns_add_u32 s{sA}, s{sA}, s{sB}\ns_add_u32 s{sA}, s{sA}, {OOFF}")
        E(f"buffer_load_dwordx4 {vr(PL+16)}, v{TMP}, {srd(SWS)}, s{sA} offen\nL_st1:")
    if "X" in P["pfS"]:
        E(f"s_cmp_eq_u32 s{sW}, 1\ns_cbranch_scc0 L_st2\ns_lshl_b32 s{sA}, s2, 9\ns_add_u32 s{sA}, s{sA}, {XOFF}")
        E(f"buffer_load_dwordx4 {vr(PL+16)}, v{vX}, {srd(SWS)}, s{sA} offen\nL_st2:")
slot_touch()
def split():
    E(f"s_mov_b32 s{sSPIN}, {min(P['spin'], 1 << 14)}\nL_tally:")
    E(f"buffer_load_dword v{vRDY}, off, {srd(SD)}, 0 sc1\ns_waitcnt vmcnt(0)\nv_readfirstlane_b32 s{sSIG}, v{vRDY}")
    E(f"s_and_b32 s{sA}, s{sSIG}, 0xff\ns_cmp_eq_u32 s{sA}, {P['NG']*NV}\ns_cbranch_scc1 L_tallied\ns_sleep 16\ns_sub_u32 s{sSPIN}, s{sSPIN}, 1\ns_cbranch_scc0 L_tally\nL_tallied:")
    h.done = h.n
    if P["force"] >= 0: E(f"s_mov_b32 s{sSIG}, {(P['force'] & 1) * 0x2000 + ((P['force'] >> 1) & 1) * 0x200000 + (P['force'] >> 2) * 0x20000000}")
    if P["wsv"]:
        E(f"s_lshr_b32 s{sA}, s{sSIG}, 24\ns_cmp_gt_u32 s{sA}, {P['NG']//2}\ns_cselect_b32 s{sA}, 0x2000, 0\ns_xor_b32 s{sO}, s{sO}, s{sA}\ns_xor_b32 s{sOP}, s{sOP}, s{sA}")
    E(f"s_lshr_b32 s{sB}, s{sC}, 2\ns_xor_b32 s{sB}, s{sB}, s{sGRP}\ns_and_b32 s{sB}, s{sB}, 1")
    for n, dst in ((0, sKD), (1, sVD)):
        E(f"s_bfe_u32 s{sA}, s{sSIG}, {0x80000 + 8 + 8*n:#x}\ns_cmp_gt_u32 s{sA}, {P['NG']//2}\ns_cselect_b32 s{sA}, 1, 0\ns_xor_b32 s{dst}, s{sA}, s{sB}")
        E(f"s_lshl_b32 s{sA}, s{dst}, 13\nv_mov_b32 v{TMP+n}, s{sA}")
    E(f"v_mov_b32 v{TMP+2}, {L_SG}\nds_write_b64 v{TMP+2}, v[{TMP}:{TMP+1}]")
    sh = 9 if P["fullline"] else 6
    E(f"s_lshl_b32 s{sA}, s{sKD}, {sh}\ns_add_u32 s{sT}, s{sE0}, s{sA}\ns_lshl_b32 s{sA}, s{sVD}, {sh}\ns_add_u32 s{sF0}, s{sF0}, s{sA}\ns_lshl_b32 s{sFB}, s{sW}, 10\ns_add_u32 s{sFB}, s{sFB}, s{sF0}\ns_waitcnt lgkmcnt(0)")
NB = P["NB"] if P["early"] else 0
def nonce_load():
    E(f"s_lshl_b32 s{sB}, s{sGRP}, 14\ns_add_u32 s{sB}, s{sB}, {OOFF}")
    if not P["e0late"]: h.issue(f"buffer_load_dwordx4 {vr(PL+4)}, off, {srd(SWS)}, s{sB} sc1 nt", "old")
def nonce_make():
    h.wait("old")
    E(f"v_perm_b32 v{TMP}, v{PL+5}, v{PL+4}, s{sSELA}\nv_perm_b32 v{TMP+1}, v{PL+7}, v{PL+6}, s{sSELB}\nv_or_b32 v{TMP}, v{TMP}, v{TMP+1}")
    E(f"v_readfirstlane_b32 s{sA}, v{TMP}")
    E(f"s_mul_i32 s{sNON}, s{sA}, 0x9e3779b1\ns_add_u32 s{sNON}, s{sNON}, 0x7f4a7c15\ns_lshr_b32 s{sB}, s{sNON}, 15\ns_xor_b32 s{sNON}, s{sNON}, s{sB}")
    E(f"s_xor_b32 s{sB}, s{sNON}, 2\ns_cmp_eq_u32 s{sNON}, s{sA}\ns_cselect_b32 s{sNON}, s{sB}, s{sNON}")
    E(f"v_mov_b32 v{vRDY}, s{sNON}")
    for m in range(4): E(f"v_lshrrev_b32 v{vTG+m}, {8*m}, v{vRDY}")
def tag_check(r, n):
    for m in range(n):
        E(f"v_perm_b32 v{TMP+2*m}, v{r+4*m+1}, v{r+4*m}, s{sSELA}\nv_perm_b32 v{TMP+2*m+1}, v{r+4*m+3}, v{r+4*m+2}, s{sSELB}")
    for m in range(n): E(f"v_or_b32 v{TMP+2*m}, v{TMP+2*m}, v{TMP+2*m+1}")
    for m in range(n): E(f"v_xor_b32 v{TMP+2*m}, s{sNON}, v{TMP+2*m}")
    for m in range(1, n): E(f"v_or_b32 v{TMP}, v{TMP}, v{TMP+2*m}")
    E(f"v_cmp_ne_u32 vcc, 0, v{TMP}")
def untag(r, n):
    for m in range(n): E(f"v_and_b32 v{r+m}, 0xffffff00, v{r+m}")
ST = 116
def reduce2(area):
    for n in range(2):
        for m in range(4): E(f"ds_read_b128 {vr(S+m*4)}, v{vSCR} offset:{area + n*4096 + m*16}")
        E("s_waitcnt lgkmcnt(0)")
        for st in (8, 4, 2):
            for m in range(st): E(f"v_add_f32 v{S+m}, v{S+m}, v{S+m+st}")
        E(f"v_add_f32 v{WT+n}, v{S}, v{S+1}")
    E(f"ds_write_b32 v{vBW}, v{WT}\nds_write_b32 v{vBW}, v{WT+1} offset:256\ns_waitcnt lgkmcnt(0)\nds_read_b128 {vr(S)}, v{vBR}\ns_waitcnt lgkmcnt(0)")
def crossed(label):
    E(f"s_lshr_b32 s{sA}, s{sC}, 2\ns_cmp_eq_u32 s{sA}, s{sKD}\ns_cbranch_scc1 {label}")
def fixed_out():
    E(f"s_cmp_eq_u32 s{sW}, 3\ns_cbranch_scc0 L_fo")
    reduce2(L_ST - L_SC)
    for m in range(4): E(f"v_bfi_b32 v{ST+m}, s{sMASK}, v{vTG+m}, v{S+m}")
    crossed("L_fo")
    E(f"s_lshl_b32 s{sA}, s2, 9\ns_add_u32 s{sA}, s{sA}, {XOFF}\ns_mov_b32 exec_hi, 0")
    E(f"buffer_store_dwordx4 {vr(ST)}, v{vX}, {srd(SWS)}, s{sA} offen {STP}\ns_mov_b64 exec, -1\nL_fo:")
def fixed_in():
    E(f"s_cmp_eq_u32 s{sW}, 3\ns_cbranch_scc0 L_fi")
    crossed("L_fi")
    E(f"s_xor_b32 s{sA}, s2, 4\ns_lshl_b32 s{sA}, s{sA}, 9\ns_add_u32 s{sA}, s{sA}, {XOFF}\ns_mov_b32 s{sSPIN}, {P['spin']}\nL_fi_poll:")
    E(f"buffer_load_dwordx4 {vr(ST)}, v{vX}, {srd(SWS)}, s{sA} offen {LDP}\ns_waitcnt vmcnt(0)")
    tag_check(ST, 1)
    E(f"s_cbranch_vccz L_fi\ns_sleep 8\ns_sub_u32 s{sSPIN}, s{sSPIN}, 1\ns_cbranch_scc0 L_fi_poll\nL_fi:")
def publish(ev):
    E(f"s_cmp_eq_u32 s{sW}, 3\ns_cbranch_scc0 L_pub{ev}")
    reduce2(0)
    if ev == 0:
        untag(ST, 4)
        for m in range(4): E(f"v_add_f32 v{S+m}, v{S+m}, v{ST+m}")
    for m in range(4): E(f"v_bfi_b32 v{S+m}, s{sMASK}, v{vTG+m}, v{S+m}")
    E(f"s_and_b32 s{sA}, s{sC}, 3\ns_lshl_b32 s{sB}, s{sKD}, 2\ns_add_u32 s{sA}, s{sA}, s{sB}\ns_lshl_b32 s{sA}, s{sA}, 8\ns_add_u32 s{sA}, s{sA}, s{sSC}\ns_add_u32 s{sA}, s{sA}, {ev * 65536}\ns_mov_b32 exec_hi, 0")
    if "s" not in P["nosync"]: E(f"buffer_store_dwordx4 {vr(S)}, v{vBS}, {srd(SWS)}, s{sA} offen {STP}")
    E(f"s_mov_b64 exec, -1\nL_pub{ev}:")
def leader(ev):
    if "l" in P["nosync"] or not P["lead"]: return
    E(f"s_and_b32 s{sA}, s{sC}, 5\ns_lshl_b32 s{sB}, s{sW}, 3\ns_or_b32 s{sA}, s{sA}, s{sB}\ns_cmp_eq_u32 s{sA}, {4*ev + 8}\ns_cbranch_scc0 L_ld{ev}")
    E(f"s_bfe_u32 s{sB}, s{sC}, 0x10001\ns_lshl_b32 s{sB}, s{sB}, 20\ns_add_u32 s{sB}, s{sB}, s{sSC}\ns_add_u32 s{sB}, s{sB}, {ev*65536}")
    E(f"s_mov_b32 s{sSPIN}, {P['spin']}\nL_lp{ev}:")
    E(f"buffer_load_dwordx4 {vr(PL)}, v{vOP}, {srd(SWS)}, s{sB} offen {LDP}")
    E(f"buffer_load_dwordx4 {vr(PL+4)}, v{vOP}, {srd(SWS)}, s{sB} offen offset:1024 {LDP}")
    E("s_waitcnt vmcnt(0)")
    tag_check(PL, 2)
    E(f"s_cbranch_vccz L_lg{ev}\ns_sleep 8\ns_sub_u32 s{sSPIN}, s{sSPIN}, 1\ns_cbranch_scc0 L_lp{ev}\nL_lg{ev}:")
    untag(PL, 8)
    for m in range(4): E(f"v_add_f32 v{PL+m}, v{PL+m}, v{PL+4+m}")
    for sw in ("v_permlane32_swap_b32", "v_permlane16_swap_b32"):
        for m in range(4): E(f"v_mov_b32 v{PL+4+m}, v{PL+m}")
        for m in range(4): E(f"{sw} v{PL+4+m}, v{PL+m}")
        for m in range(4): E(f"v_add_f32 v{PL+m}, v{PL+4+m}, v{PL+m}")
    for m in range(4): E(f"v_bfi_b32 v{PL+m}, s{sMASK}, v{vTG+m}, v{PL+m}")
    E(f"s_lshl_b32 s{sB}, s{sC}, 7\ns_add_u32 s{sB}, s{sB}, s{sTOT}\ns_mov_b64 exec, 0xffff")
    E(f"buffer_store_dwordx4 {vr(PL)}, v{vOP}, {srd(SWS)}, s{sB} offen {STP}\ns_mov_b64 exec, -1\nL_ld{ev}:")
def f_loads(ks, ts):
    for t in ts:
        if P["noF"]: continue
        pat = P[f"F{ks}"]; h.window(int(pat[t % len(pat)]))
        E(f"s_add_u32 m0, s{sFS}, {t*1024}\ns_add_u32 s{sA}, s{sFB}, {ks*524288 + t*32768}")
        h.issue(f"buffer_load_dwordx4 v{vD+(t&7)}, {srd(SF)}, s{sA} offen {P['fpol']} lds")
def f_reads(ks):
    h.drain()
    for w_ in range(4):
        for hh in range(2): E(f"v_xor_b32 v{TMP+hh}, {w_*16}, v{vFA+hh}")
        for bb in range(2):
            for hb in range(2):
                for hh in range(2):
                    E(f"ds_read_b64_tr_b16 {ar(aFT + (((bb*4+w_)*2+hb)*2+ks)*4 + hh*2, 2)}, v{TMP+hh} offset:{bb*256 + hb*8}")
        E("s_waitcnt lgkmcnt(0)")
def xg(op, r):
    for sw in ("v_permlane32_swap_b32", "v_permlane16_swap_b32"):
        E(f"v_mov_b32 v{TMP+1}, v{r}\n{sw} v{TMP+1}, v{r}\n{op} v{r}, v{TMP+1}, v{r}")
def softmax(ev):
    E(f"s_cmp_eq_u32 s{sW}, 0\ns_cbranch_scc0 L_sm{ev}")
    if "l" not in P["nosync"]:
        E(f"s_add_u32 s{sA}, s{sTOT}, {ev*512}" if P["lead"] else f"s_add_u32 s{sA}, s{sSC}, {ev*65536}")
        E(f"s_mov_b32 s{sSPIN}, {P['spin']}\nL_sc{ev}:")
        for m, o in enumerate((0, 16, 128, 144)): E(f"buffer_load_dwordx4 {vr(S+m*4)}, v{vSC}, {srd(SWS)}, s{sA} offen offset:{o} {LDP}")
        E("s_waitcnt vmcnt(0)")
        tag_check(S, 4)
        E(f"s_cbranch_vccz L_sc_ok{ev}\ns_sleep 8\ns_sub_u32 s{sSPIN}, s{sSPIN}, 1\ns_cbranch_scc0 L_sc{ev}\nL_sc_ok{ev}:")
    untag(S, 16)
    for ctl in ("quad_perm:[2,3,0,1]", "row_ror:4", "row_ror:8") if not P["lead"] else ():
        for m in range(16): E(f"v_add_f32_dpp v{S+m}, v{S+m}, v{S+m} {ctl} row_mask:0xf bank_mask:0xf")
    maxtree("v_max3_f32", TMP + 2, range(S, S + 16)); xg("v_max_f32", TMP + 2)
    E(f"v_mul_f32 v{TMP+2}, s{sCE}, v{TMP+2}")
    for m in range(16): E(f"v_fma_f32 v{S+m}, v{S+m}, s{sCE}, -v{TMP+2}")
    for m in range(16): E(f"v_exp_f32 v{S+m}, v{S+m}")
    for m in range(4): E(f"v_add_f32 v{TMP+4+m}, v{S+m}, v{S+m+4}")
    for m in range(4): E(f"v_add_f32 v{TMP+8+m}, v{S+m+8}, v{S+m+12}")
    for m in range(4): E(f"v_add_f32 v{TMP+4+m}, v{TMP+4+m}, v{TMP+8+m}")
    E(f"v_add_f32 v{TMP+4}, v{TMP+4}, v{TMP+5}\nv_add_f32 v{TMP+6}, v{TMP+6}, v{TMP+7}\nv_add_f32 v{TMP+3}, v{TMP+4}, v{TMP+6}")
    xg("v_add_f32", TMP + 3)
    E(f"v_rcp_f32 v{TMP+3}, v{TMP+3}")
    for m in range(16): E(f"v_mul_f32 v{S+m}, v{S+m}, v{TMP+3}")
    for m in range(8): E(f"v_cvt_pk_bf16_f32 v{PB+m}, v{S+2*m}, v{S+2*m+1}")
    E(f"ds_write_b128 v{vPB}, {vr(PB)}\nds_write_b128 v{vPB}, {vr(PB+4)} offset:1024\ns_waitcnt lgkmcnt(0)\nL_sm{ev}:")
def weights(ev):
    E(f"ds_read_b128 {vr(PB)}, v{vPB}\nds_read_b128 {vr(PB+4)}, v{vPB} offset:1024")
    E("s_mov_b32 s100, 0x00030003\ns_mov_b32 s101, 0x00030003\ns_waitcnt lgkmcnt(0)")
    for bb in range(2):
        for w_ in range(4):
            for ks in range(2):
                for hb in range(2):
                    c_ = "0" if ks == 0 else vr(DD + hb * 4)
                    E(f"v_mfma_f32_16x16x32_bf16 {vr(DD+hb*4)}, {ar(aFT + (((bb*4+w_)*2+hb)*2+ks)*4)}, {vr(PB+ks*4)}, {c_}")
            for kk in range(4): E(f"v_cvt_pk_bf16_f32 v{WT+kk}, v{DD+2*kk}, v{DD+2*kk+1}")
            E(f"s_mov_b64 exec, s[100:101]\nds_write_b128 v{vWW}, {vr(WT)} offset:{ev*4096 + bb*512 + w_*128}\ns_mov_b64 exec, -1")
    E("s_waitcnt lgkmcnt(0)")
for k in BARS:
    if k in EBAR:
        B = EBAR.index(k)
        h.wait(("D", B))
        E("s_barrier")
        if B == 0: nonce_load(); split(); nonce_make()
        if B == 1: fixed_out()
        if B == 3: fixed_in()
        if 0 < B < 4: e_dma(B + 1)
        if B == 3: f_loads(0, range(NB))
        if B == 4:
            publish(0)
            f_loads(0, range(NB, 10)); leader(0); f_loads(0, range(10, 16)); f_reads(0)
            if P["smpos"] == 1: softmax(0)
            f_loads(1, range(8))
            if P["smpos"] == 2: softmax(0)
            f_loads(1, range(8, 16)); f_reads(1)
            if not P["smpos"]: softmax(0)
    elif k in SBAR:
        E("s_barrier"); e_dma(1)
    elif k in UBAR:
        E("s_barrier"); publish(1)
    elif k in LBAR:
        E("s_barrier"); leader(1)
    elif k in PBAR:
        E("s_barrier"); weights(PBAR.index(k))
    elif k == XBAR[0]:
        E("s_barrier"); softmax(1)
    else:
        E("s_barrier")
E("s_barrier")
for w_ in range(4): E(f"ds_read_b128 {vr(S+w_*4)}, v{vOR} offset:{w_*512}")
E("s_mov_b32 exec_hi, 0\ns_waitcnt lgkmcnt(2)")
for m in range(4): E(f"v_add_f32 v{S+m}, v{S+m}, v{S+4+m}")
E("s_waitcnt lgkmcnt(0)")
for m in range(4): E(f"v_add_f32 v{S+8+m}, v{S+8+m}, v{S+12+m}")
for m in range(4): E(f"v_add_f32 v{S+m}, v{S+m}, v{S+8+m}")
for m in range(4): E(f"v_bfi_b32 v{S+m}, s{sMASK}, v{vTG+m}, v{S+m}")
E(f"buffer_store_dwordx4 {vr(S)}, v{vOS}, {srd(SWS)}, s{sO} offen sc1\ns_mov_b64 exec, -1")
E(f"s_cmp_eq_u32 s{sW}, 0\ns_cbranch_scc0 L_done")
if P["stamps"]: E("s_memrealtime s[86:87]")
E(f"s_mov_b32 s{sSPIN}, {P['spin']}\nL_poll:")
E(f"buffer_load_dwordx4 {vr(PL)}, v{vOP}, {srd(SWS)}, s{sOP} offen sc1")
E(f"buffer_load_dwordx4 {vr(PL+4)}, v{vOP}, {srd(SWS)}, s{sOP} offen offset:1024 sc1")
E("s_waitcnt vmcnt(0)")
tag_check(PL, 2)
E(f"s_sub_u32 s{sSPIN}, s{sSPIN}, 1\ns_cbranch_scc1 L_got\ns_cbranch_vccnz L_poll\nL_got:")
untag(PL, 8)
for m in range(4): E(f"v_add_f32 v{PL+m}, v{PL+m}, v{PL+4+m}")
E(f"v_permlane32_swap_b32 v{PL}, v{PL+1}\nv_permlane32_swap_b32 v{PL+2}, v{PL+3}")
E(f"v_add_f32 v{PL}, v{PL}, v{PL+1}\nv_add_f32 v{PL+2}, v{PL+2}, v{PL+3}")
E(f"v_permlane16_swap_b32 v{PL}, v{PL+2}\nv_add_f32 v{PL}, v{PL}, v{PL+2}\nv_cvt_pk_bf16_f32 v{PL+4}, v{PL}, v{PL}")
if P["fixt"]:
    E(f"L_fix:\ns_memrealtime s[92:93]\ns_waitcnt lgkmcnt(0)\ns_sub_u32 s92, s92, s90\ns_cmp_lt_u32 s92, {P['fixt']}\ns_cbranch_scc1 L_fix")
E(f"buffer_store_short v{PL+4}, v{vOUT}, {srd(SO)}, s{sOUT} offen")
if P["stamps"]:
    E("s_waitcnt vmcnt(0)\ns_memrealtime s[92:93]\ns_getreg_b32 s72, hwreg(HW_REG_XCC_ID)")
    E(f"v_mov_b32 v{TMP}, 0\nds_read_b128 v[56:59], v{TMP}\nds_read_b128 v[60:63], v{TMP} offset:16\ns_waitcnt lgkmcnt(0)")
    E("s_sub_u32 s86, s86, s90")
    for m in range(8): E(f"v_subrev_u32 v{56+m}, s90, v{56+m}")
    for m, sr in enumerate((90, 91, 92, 93, 72, 84, 86, sSIG)): E(f"v_mov_b32 v{48+m}, s{sr}")
    E("v_mov_b32 v53, v63")
    E(f"s_lshl_b32 s{sA}, s2, 6\ns_add_u32 s{sA}, s{sA}, 0x20000000\ns_mov_b64 exec, 1")
    for m in range(4): E(f"buffer_store_dwordx4 {vr(48+m*4)}, off, {srd(SWS)}, s{sA} offset:{m*16}")
E("L_done:\ns_endpgm")
E.raw('.section .rodata,"a"\n.p2align 6')
E.raw(f""".amdhsa_kernel {NAME}
  .amdhsa_next_free_vgpr 256
  .amdhsa_next_free_sgpr 102
  .amdhsa_accum_offset 128
  .amdhsa_group_segment_fixed_size 0
  .amdhsa_float_denorm_mode_32 3
  .amdhsa_kernarg_size 64
  .amdhsa_user_sgpr_count 2
  .amdhsa_user_sgpr_kernarg_segment_ptr 1
  .amdhsa_system_sgpr_workgroup_id_x 1
.end_amdhsa_kernel""")
open(out, "w").write(E.text())
print(out, "instructions", E.count, "auto nops", E.nops, "held", HELD, file=sys.stderr)
```

```python
import sys, struct, math
from emit import Emitter

P = dict(X=5, XE=10, NE=4, XS=5, XR="", first=5, stamps=0, fine="", spin=1 << 20, prio=1,
         D0="8", D1="2", D2="12", D3="12", D4="2", F0="122", F1="122", NB=1, early=1, smpos=1, PB0=246, PB1=352, SM1=320, SB=20, EB="12,44,76,108", noE=0, noF=0, nosync="",
         jit=0, force=-1, thr=64, fixt=0, fullline=0, kvpol="nt", efpol="", tE=0, tF=0, tpol="nt", pfM="EF", pfL="", pfLb=1, e0pol="", pfpos=2, epol="", fpol="", XP="5554", XE1=7, NE1=0, smix=1, lead=0, LB=292, stpol="sc1", ldpol="sc1", wsv=1, kst=0, noq=0, noprobe=0, XB="", pfS="", e0late=1, NG=32, GM=0xffffffff, cnt=1, cthr=2, cmax=14, cdump=0)
out = sys.argv[1]
for a in sys.argv[2:]:
    k, v = a.split("="); P[k] = int(v, 0) if isinstance(P[k], int) else v
STP, LDP = P["stpol"].replace("+", " "), P["ldpol"].replace("+", " ")
NV = 3 if P["wsv"] else 2
NAME = "standalone__low_rank_proj_linformer__decode_kernel"
E = Emitter()

def srd(n): return f"s[{n}:{n+3}]"
def vr(n, k=4): return f"v[{n}:{n+k-1}]"
def ar(n, k=4): return f"a[{n}:{n+k-1}]"
SK, SV, SE, SF, SQ, SO, SD, SWS = 20, 24, 28, 32, 36, 40, 44, 48
sW, sGRP, sC, sKV, sT, sA, sB, sSELL, sSELH, sCE, sE0, sM, sSC, sO, sOP, sOUT, sSPIN, sT2 = 3, *range(52, 69)
sKD, sVD, sHD, sFS, sFB = 69, 88, 89, 70, 71
sNON, sSELA, sSELB, sMASK, sSIG, sF0 = 94, 95, 96, 97, 98, 99
HB = 0x100000; OOFF = 0x40000
L_SC = 65536; L_OL = L_SC + 8192; L_WA = L_OL + 8192; L_PB = L_WA + 8192; L_SG = L_PB + 2048; L_F2 = L_SG + 1024; LDS_BYTES = L_F2 + 65536
L_ST = L_OL
TOFF = 0xF0000; sTOT = 74
XOFF = 0xC0000

class Q:
    def __init__(s): s.n = 0; s.done = 0; s.tag = {}
    def issue(s, text, tag=None):
        E(text); s.n += 1
        if tag is not None: s.tag[tag] = s.n
    def wait(s, tag):
        idx = s.tag[tag]
        if idx <= s.done: return
        assert s.n - idx <= 63
        E(f"s_waitcnt vmcnt({s.n - idx})"); s.done = idx
    def window(s, w):
        if w and s.n - s.done >= w: E(f"s_waitcnt vmcnt({w-1})"); s.done = s.n - (w - 1)
    def drain(s): E("s_waitcnt vmcnt(0)"); s.done = s.n
def build_srd(n, lo, size):
    E(f"s_mov_b32 s{n}, s{lo}\ns_mov_b32 s{n+1}, s{lo+1}\ns_mov_b32 s{n+2}, {size}\ns_mov_b32 s{n+3}, 0x00020000")
def maxtree(op, dst, regsl):
    r = list(regsl)
    E(f"{op} v{dst}, v{r[0]}, v{r[1]}, v{r[2]}"); r = r[3:]
    while len(r) >= 2: E(f"{op} v{dst}, v{dst}, v{r[0]}, v{r[1]}"); r = r[2:]
    if r: E(f"{op} v{dst}, v{dst}, v{r[0]}, v{r[0]}")

def tile(T):
    if T < 32: return (T >> 4) * 2 + ((T >> 1) & 1), ((T >> 2) & 3) * 2 + (T & 1)
    return (T >> 3) & 3, T & 7

EBAR = [int(x) for x in P["EB"].split(",")]
SBAR = [P["SB"]]
EBAR.append(130)
UBAR = [130, 258]
PBAR = [P["PB0"], P["PB1"]]
XBAR = [P["SM1"], 384]
LBAR = [P["LB"]] if P["lead"] else []
BARS = sorted(set(EBAR + SBAR + UBAR + PBAR + XBAR + LBAR + [int(x) for x in P["XB"].split(",") if x]))
def fixed(T): return T < 4
HELD = [T for T in range(0, 16, 4) if EBAR[T >> 2] + 4 > 8 * (T + 1)]

E.raw(f"; @launch grid=(256,1,1) block=(512,1,1) lds={LDS_BYTES}")
E.raw('.amdgcn_target "amdgcn-amd-amdhsa--gfx950"\n.text')
E.raw(f".globl {NAME}\n.p2align 8\n.type {NAME},@function\n{NAME}:")
E("s_load_dwordx16 s[4:19], s[0:1], 0")
if P["stamps"] or P["fixt"]: E("s_memrealtime s[90:91]")
E("s_cmp_ge_u32 s2, 256\ns_cbranch_scc1 L_done")
vL, vJ, vG = 0, 126, 127
E(f"v_lshrrev_b32 v1, 6, v0\nv_and_b32 v{vL}, 63, v0")
E(f"v_readfirstlane_b32 s{sW}, v1")
E(f"v_and_b32 v{vJ}, 15, v{vL}\nv_lshrrev_b32 v{vG}, 4, v{vL}")
E(f"s_lshr_b32 s{sGRP}, s2, 3\ns_and_b32 s{sC}, s2, 7")
E(f"s_lshr_b32 s{sHD}, s{sGRP}, 1\ns_lshl_b32 s{sHD}, s{sHD}, 3\ns_and_b32 s{sA}, s{sGRP}, 1\ns_add_u32 s{sHD}, s{sHD}, s{sA}")
E(f"s_lshl_b32 s{sKV}, s{sHD}, 21\ns_and_b32 s{sB}, s{sC}, 3\ns_lshl_b32 s{sA}, s{sB}, 19\ns_add_u32 s{sKV}, s{sKV}, s{sA}")
if P["jit"]:
    E(f"s_mul_i32 s{sA}, s2, 37\ns_mul_i32 s{sT}, s{sW}, {P['jit'] & 1}\ns_add_u32 s{sA}, s{sA}, s{sT}\ns_lshr_b32 s{sA}, s{sA}, 2\ns_and_b32 s{sA}, s{sA}, 15\ns_cmp_lt_u32 s{sA}, 12\ns_cbranch_scc1 L_nojit")
    E(f"s_sub_u32 s{sA}, s{sA}, 11\ns_mul_i32 s{sA}, s{sA}, {P['jit']}\nL_jit:\ns_sleep 64\ns_sub_u32 s{sA}, s{sA}, 1\ns_cmp_lg_u32 s{sA}, 0\ns_cbranch_scc1 L_jit\nL_nojit:")
E(f"s_cmp_ge_u32 s{sW}, 4\ns_cbranch_scc0 L_stream")

vD, vFA, vSC, vSCR, vL4, vOR, vOS, vOP, vOUT, vRDY, vWW, vX, vPB, vBW, vBR, vBS = 4, 12, *range(16, 30)
vTG = 112
S, PB, DD, WT, TMP, PL = 32, 48, 56, 64, 68, 80
aFT = 0
h = Q()
E(f"s_sub_u32 s{sW}, s{sW}, 4")
def stage_addr(mix, pair):
    b1 = 6 if mix else 5
    def spread(x): return (x & 1) * 16 + (((x >> 1) & 1) << b1) + (x >> 2) * 128
    E(f"v_lshrrev_b32 v{TMP+1}, 5, v{vL}\nv_xor_b32 v{TMP}, v{vJ}, v{TMP+1}\nv_and_b32 v{TMP+2}, 1, v{TMP}\nv_lshlrev_b32 v{TMP+2}, 4, v{TMP+2}")
    E(f"v_bfe_u32 v{TMP+3}, v{TMP}, 1, 1\nv_lshl_add_u32 v{TMP+2}, v{TMP+3}, {b1}, v{TMP+2}")
    E(f"v_lshrrev_b32 v{TMP}, 2, v{TMP}\nv_lshl_add_u32 v{TMP+2}, v{TMP}, 7, v{TMP+2}\nv_and_b32 v{TMP}, 1, v{vG}\nv_lshl_add_u32 v{TMP+2}, v{TMP}, {pair.bit_length()-1}, v{TMP+2}")
    E(f"v_lshl_add_u32 v{vD}, v{TMP+1}, 14, v{TMP+2}")
    for t in range(1, 8): E(f"v_xor_b32 v{vD+t}, {spread(2*t)}, v{vD}")
stage_addr(P["smix"], 32 if P["smix"] else 64)
E(f"s_lshl_b32 s{sF0}, s{sB}, 12\ns_lshl_b32 s{sA}, s{sW}, 18\ns_add_u32 s{sE0}, s{sF0}, s{sA}\ns_lshl_b32 s{sM}, s{sW}, 13")
E(f"s_lshr_b32 s{sT}, s{sC}, 2\ns_lshl_b32 s{sT}, s{sT}, 9\ns_add_u32 s{sT}, s{sT}, s{sE0}")
E(f"s_mov_b32 s{SE+2}, {1<<20}\ns_mov_b32 s{SE+3}, 0x00020000\ns_mov_b32 s{SK+2}, {1<<28}\ns_mov_b32 s{SK+3}, 0x00020000")
E("s_waitcnt lgkmcnt(0)")
E(f"s_mov_b32 s{SE}, s10\ns_mov_b32 s{SE+1}, s11")
E(f"s_cmp_lt_u32 s{sC}, {NV}\ns_cbranch_scc0 L_noprobe\ns_cmp_eq_u32 s{sW}, 0\ns_cbranch_scc0 L_probed")
E(f"s_cmp_eq_u32 s{sC}, 0\ns_cselect_b32 s{SK}, s6, s8\ns_cselect_b32 s{SK+1}, s7, s9\ns_add_u32 s{sA}, s{sKV}, 0x70000")
if P["wsv"]: E(f"s_cmp_eq_u32 s{sC}, 2\ns_cselect_b32 s{SK}, s18, s{SK}\ns_cselect_b32 s{SK+1}, s19, s{SK+1}\ns_cselect_b32 s{sA}, 0x180000, s{sA}")
E(f"s_bfe_u32 s{sSIG}, s{sGRP}, 0x10001\ns_lshl_b32 s{sB}, s{sSIG}, 13\ns_add_u32 s{sA}, s{sA}, s{sB}\ns_lshl_b32 s{sB}, s{sGRP}, 7")
E(f"s_add_u32 s{sA}, s{sA}, s{sB}\ns_xor_b32 s{sB}, s{sA}, 0x2000\ns_mov_b32 s92, 0\ns_mov_b64 exec, 1")
E.raw("  .p2align 6")
if P["noprobe"]: E("s_barrier\ns_barrier")
else: E(f"s_barrier\nbuffer_load_dword v{PL}, off, {srd(SK)}, s{sA} nt\nbuffer_load_dword v{PL+1}, off, {srd(SK)}, s{sB} nt\ns_barrier")
if P["cnt"]:
    E("s_waitcnt vmcnt(1)\nL_gap:\ns_getreg_b32 s100, hwreg(HW_REG_IB_STS, 0, 4)\ns_add_u32 s92, s92, 1\ns_cmp_lg_u32 s100, 0\ns_cbranch_scc1 L_gap\ns_mov_b64 exec, -1\ns_branch L_noprobe")
else: E("s_waitcnt vmcnt(1)\ns_memtime s[100:101]\ns_waitcnt vmcnt(0)\ns_memtime s[92:93]\ns_mov_b64 exec, -1\ns_branch L_noprobe")
E("L_probed:\ns_barrier\ns_barrier\nL_noprobe:")
def e_dma(B, ts=range(8)):
    for t in ts:
        if P["noE"]: h.tag[("D", B)] = 0; continue
        pat = P[f"D{B}"]; h.window(int(pat[t % len(pat)]))
        E(f"s_add_u32 m0, s{sM}, {(B & 1) * 32768 + t * 1024}")
        E(f"s_add_u32 s{sA}, s{sT}, {t * 32768 + (B & 3) * 1024}")
        h.issue(f"buffer_load_dwordx4 v{vD+t}, {srd(SE)}, s{sA} offen {P['epol' if B else 'e0pol']} lds", ("D", B))
def first_touch(which):
    E(f"s_lshl_b32 s{sA}, s2, 12\ns_lshl_b32 s{sB}, s{sW}, 10\ns_add_u32 s{sA}, s{sA}, s{sB}\nv_lshlrev_b32 v{TMP+8}, 4, v{vL}")
    if "E" in which: E(f"buffer_load_dwordx4 {vr(PL+8)}, v{TMP+8}, {srd(SE)}, s{sA} offen")
    if "F" in which: E(f"buffer_load_dwordx4 {vr(PL+12)}, v{TMP+8}, {srd(SF)}, s{sA} offen")
if P["pfM"] and P["pfpos"] == 0:
    build_srd(SF, 12, 1 << 20); first_touch(P["pfM"])
N0 = int(P["D0"][0]) or 8
if P["e0late"]:
    build_srd(SWS, 18, 1 << 30)
    E(f"s_lshl_b32 s{sB}, s{sGRP}, 14\ns_add_u32 s{sB}, s{sB}, {OOFF}")
    h.issue(f"buffer_load_dwordx4 {vr(PL+4)}, off, {srd(SWS)}, s{sB} sc1 nt", "old")
else: e_dma(0, range(N0))
E("s_branch L_helper")

E("L_stream:")
vKV, vEA, vSCW, vOW, vWA, vQ = 1, 2, 3, 4, 5, 6
RING, NSLOT = 8, 12
VBA, VBB, WA = 56, 88, 120
TT, TBO, ACK2, TBE, ACK1 = 56, 64, 68, 88, 92
def TB(T): return TBO if T & 1 else TBE
def ACK(u): return ACK2 if u & 1 else ACK1
def QR(u): return 84 if u == 3 else 108 + 4 * u
aE, aV = 0, 0
q = Q()
def win(k):
    T = k >> 3
    if T >= 64 - P["NE"]: return P["XE"]
    if T >= 64 - P["NE1"]: return P["XE1"]
    for part in filter(None, P["XR"].split("/")):
        lo, hi, pat = part.split(",")
        if int(lo) <= k < int(hi): return int(pat[k % len(pat)], 16)
    Tn = min(k + P["XS"], 511) >> 3
    if fixed(Tn): return P["XS"]
    if P["XP"]: return int(P["XP"][k % len(P["XP"])], 16)
    return P["X"]
next_load = [0]; based = [0]
def tile_base(T):
    u, b = tile(T)
    if fixed(T): base, off = sKV, u * 4194304 + b * (4096 if P["smix"] else 8192)
    else: base, off = (sKD if T < 32 else sVD), u * 4194304 + b * 65536
    r = sT2 if T & 1 else sT
    E(f"s_add_u32 s{r}, s{base}, {off}" if off else f"s_mov_b32 s{r}, s{base}")
    based[0] = T + 1
def issue_load():
    n = next_load[0]; next_load[0] += 1
    T, i = n >> 3, n & 7
    if based[0] <= T: tile_base(T)
    r = RING + (n % NSLOT) * 4
    q.issue(f"buffer_load_dwordx4 {vr(r)}, v{vKV}, {srd(SK if T < 32 else SV)}, s{sT2 if T & 1 else sT} offen offset:{i*256} {P['kvpol'].replace('+', ' ')}", ("ld", n))
E(f"v_lshlrev_b32 v{vQ}, 4, v{vJ}\nv_and_b32 v7, 1, v{vG}\nv_lshl_add_u32 v{vKV}, v7, 15, v{vQ}\nv_lshrrev_b32 v2, 1, v{vG}\nv_lshl_add_u32 v{vKV}, v2, 14, v{vKV}")
E(f"s_lshl_b32 s{sA}, s{sW}, 11\ns_add_u32 s{sKD}, s{sKV}, s{sA}\ns_lshr_b32 s{sA}, s{sC}, 2\ns_lshl_b32 s{sA}, s{sA}, 16\ns_add_u32 s{sKV}, s{sKD}, s{sA}")
if P["smix"]: E(f"s_lshr_b32 s{sA}, s{sW}, 1\ns_lshl_b32 s{sA}, s{sA}, 12\ns_add_u32 s{sKV}, s{sKV}, s{sA}")
E(f"s_lshl_b32 s{sB}, s{sHD}, 8")
E(f"s_mov_b32 s{SK+2}, {1<<28}\ns_mov_b32 s{SK+3}, 0x00020000\ns_mov_b32 s{SQ+2}, 32768\ns_mov_b32 s{SQ+3}, 0x00020000")
tile_base(0)
E("s_waitcnt lgkmcnt(0)")
E(f"s_mov_b32 s{SK}, s6\ns_mov_b32 s{SK+1}, s7\ns_mov_b32 s{SQ}, s4\ns_mov_b32 s{SQ+1}, s5")
E(f"s_cmp_lt_u32 s{sC}, {NV}\ns_cbranch_scc0 L_go\ns_barrier\ns_barrier\nL_go:")
if P["kst"]: E("s_memrealtime s[80:81]\ns_mov_b32 s82, s90")
for n in range(P["first"]): issue_load()
if P["prio"]: E(f"s_setprio {P['prio']}")
E(f"v_lshlrev_b32 v7, 3, v7\nv_lshl_add_u32 v7, v2, 2, v7\nv_add_u32 v7, s{sW}, v7")
E(f"v_xor_b32 v7, v7, v{vJ}\nv_lshlrev_b32 v7, 4, v7\nv_lshl_add_u32 v{vEA}, v{vJ}, 9, v7")
E(f"s_lshl_b32 s{sA}, s{sW}, 4\ns_add_u32 s{sA}, s{sA}, {L_SC}\nv_lshlrev_b32 v7, 6, v{vJ}\nv_lshl_add_u32 v7, v{vG}, 2, v7\nv_add_u32 v{vSCW}, s{sA}, v7")
E(f"s_lshl_b32 s{sA}, s{sW}, 9\ns_add_u32 s{sA}, s{sA}, {L_OL}\nv_lshlrev_b32 v7, 5, v{vJ}\nv_add_u32 v{vOW}, s{sA}, v7")
E(f"s_lshl_b32 s{sA}, s{sW}, 7\ns_add_u32 s{sA}, s{sA}, {L_WA}\nv_and_b32 v7, 1, v{vJ}\nv_lshlrev_b32 v7, 6, v7\nv_lshl_add_u32 v7, v{vG}, 4, v7\nv_add_u32 v{vWA}, s{sA}, v7")
def q_load(u): q.issue(f"buffer_load_dwordx4 {vr(QR(u))}, v{vQ}, {srd(SQ)}, s{sB} offen offset:{u*512} nt", ("q", u))
if P["noq"]: q.tag[("q", 1)] = 0
else: q_load(0); q_load(1)
build_srd(SV, 8, 1 << 28)
E(f"s_mov_b32 s{sSELL}, 0x05040100\ns_mov_b32 s{sSELH}, 0x07060302\nv_mov_b32 v7, {L_SG}")

def vbuf(T): return VBB if (T & 1) == 0 else VBA
def v_finish(T, es):
    for e in es:
        c_ = "0" if (T & 7) == 0 else ar(aV + e * 4)
        E(f"v_mfma_f32_16x16x32_bf16 {ar(aV+e*4)}, {vr(WA+(T&1)*4)}, {vr(vbuf(T)+e*4)}, {c_}")
def v_epi(u):
    E("s_mov_b64 exec, 0xffff")
    for e in range(8): E(f"ds_write_b32 v{vOW}, a{aV + e*4 + (u & 1)} offset:{u*2048 + e*4}")
    E("s_mov_b64 exec, -1")
def k_epi(u, area=0):
    a = ACK(u)
    for b in range(4): E(f"v_add_f32 v{a+b*4}, v{a+b*4}, v{a+b*4+1}")
    for b in range(4): E(f"v_add_f32 v{a+b*4+2}, v{a+b*4+2}, v{a+b*4+3}")
    for b in range(4): E(f"v_add_f32 v{a+b*4}, v{a+b*4}, v{a+b*4+2}")
    for b in range(4): E(f"ds_write_b32 v{vSCW}, v{a+b*4} offset:{area + (u & 1)*4096 + b*1024}")
last_tile = {tile(T)[0]: T for T in range(32)}
QL = P["first"]
lds_pending = False
for k in range(512):
    T, i = k >> 3, k & 7
    if i == 0: E(f"; ---- tile {T}")
    if P["stamps"] and not P["fine"] and i == 0 and T % 8 == 0 and T: E(f"s_memrealtime s[{70+2*(T//8-1)}:{71+2*(T//8-1)}]")
    q.wait(("ld", k))
    if P["fine"]:
        fs = [int(x) for x in P["fine"].split(",")]
        if k in fs: E(f"s_memrealtime s[{70+2*fs.index(k)}:{71+2*fs.index(k)}]")
    while next_load[0] < min(512, k + win(k) + 1): issue_load()
    assert not (k <= QL and next_load[0] > NSLOT), "ring slot reused before its row was consumed"
    oldest = next_load[0] - 1 - NSLOT
    assert k <= QL or oldest + (0 if oldest < 256 else (oldest & 1) ^ 1) < k
    if k in BARS: E("s_waitcnt lgkmcnt(0)\ns_barrier"); lds_pending = False
    elif lds_pending and (i == 0 or k in (SBAR[0] + 1, 510)): E("s_waitcnt lgkmcnt(0)"); lds_pending = False
    if k == SBAR[0]: E(f"ds_read_b64 v[{WA}:{WA+1}], v7"); lds_pending = True
    if k == SBAR[0] + 1:
        assert based[0] <= 4
        E(f"v_readfirstlane_b32 s{sA}, v{WA+1}\ns_add_u32 s{sVD}, s{sKD}, s{sA}\nv_readfirstlane_b32 s{sA}, v{WA}\ns_add_u32 s{sKD}, s{sKD}, s{sA}")
    if k == QL: q.wait(("q", 1))
    if k == 128: q.wait(("q", 3))
    if i == 0 and 0 < T <= 32:
        for m in range(4): E(f"v_cvt_pk_bf16_f32 v{TB(T-1)+m}, v{TT+2*m}, v{TT+2*m+1}")
    if T > 32 and i in (0, 2, 4, 6): v_finish(T - 1, (i, i + 1))
    if T < 32:
        for kk in ([] if k < QL else range(k + 1) if k == QL else [k]):
            for c4 in range(4):
                E(f"v_dot2_f32_bf16 v{TT+(kk&7)}, v{RING+(kk%NSLOT)*4+c4}, v{QR(tile(T)[0])+c4}, {'0' if c4 == 0 else 'v%d' % (TT+(kk&7))}")
    if i == 0 and 0 < T <= 32:
        for Tf in ([] if T - 1 in HELD else [T - 2, T - 1] if T - 2 in HELD else [T - 1]):
            u, b_ = tile(Tf)
            assert EBAR[b_ >> 1 if Tf < 16 or b_ > 1 else 4] + 4 <= k
            for blk in range(4):
                c_ = "0" if b_ == (2 if u < 2 and not fixed(Tf) else 0) else vr(ACK(u) + blk * 4)
                E(f"v_mfma_f32_16x16x32_bf16 {vr(ACK(u)+blk*4)}, {vr(TB(Tf))}, {ar(aE+(b_*4+blk)*4)}, {c_}")
    for u in range(4):
        if k == 8 * (last_tile[u] + 1) + 1: k_epi(u)
        if u < 2 and k == 16 * u + 17: k_epi(u, L_ST - L_SC)
    if T >= 32 and i & 1:
        r, rp = RING + (k % NSLOT) * 4, RING + ((k - 1) % NSLOT) * 4
        for c4 in range(4):
            E(f"v_perm_b32 v{vbuf(T)+(2*c4)*4+(i>>1)}, v{r+c4}, v{rp+c4}, s{sSELL}")
            E(f"v_perm_b32 v{vbuf(T)+(2*c4+1)*4+(i>>1)}, v{r+c4}, v{rp+c4}, s{sSELH}")
    if T in (40, 48, 56) and i == 7: v_epi((T - 40) >> 3)
    for d in range(4):
        if k - d in EBAR:
            B = EBAR.index(k - d); b0 = d >> 1; lds_pending = True
            for blk in (2 * (d & 1), 2 * (d & 1) + 1):
                E(f"ds_read_b128 {ar(aE + ((2*(B & 3)+b0)*4+blk)*4)}, v{vEA} offset:{(B & 1)*32768 + blk*8192 + b0*256}")
    if T >= 32 and i == 3:
        E(f"ds_read_b128 {vr(WA+(T&1)*4)}, v{vWA} offset:{((T-32)>>4)*4096 + (T&7)*512}"); lds_pending = True
    if k in (104, 106): q_load(2 + (k - 104) // 2)
    if (next_load[0] & 7) >= 4 and based[0] == (next_load[0] >> 3) + 1 and based[0] < 64 and (based[0] != 4 or k > SBAR[0]): tile_base(based[0])
if P["stamps"]: E("s_memrealtime s[84:85]")
v_finish(63, range(8))
v_epi(3)
if P["stamps"]:
    E(f"s_cmp_eq_u32 s{sW}, 0\ns_cbranch_scc0 L_nost\ns_waitcnt lgkmcnt(0)")
    for m, sr in enumerate((70, 72, 74, 76, 78, 80, 82, 84)): E(f"v_mov_b32 v{8+m}, s{sr}")
    E("v_mov_b32 v7, 0\nds_write_b128 v7, v[8:11]\nds_write_b128 v7, v[12:15] offset:16\nL_nost:")
E("s_waitcnt lgkmcnt(0)\ns_barrier\ns_endpgm")

E("L_helper:")
build_srd(SD, 16, 256)
E(f"s_lshl_b32 s{sA}, s{sW}, 3\ns_or_b32 s{sA}, s{sA}, s{sC}\ns_cmp_lt_u32 s{sA}, {NV}\ns_cbranch_scc0 L_voted\ns_waitcnt lgkmcnt(0)")
if P["NG"] < 32: E(f"s_mov_b32 s{sB}, {P['GM']:#x}\ns_bitcmp1_b32 s{sB}, s{sGRP}\ns_cbranch_scc0 L_voted")
if P["cdump"]: E("s_mov_b32 s75, s92")
E(f"s_sub_u32 s92, s92, {P['cthr']+1}\ns_cmp_lt_u32 s92, {P['cmax']-P['cthr']-1}" if P["cnt"] else f"s_sub_u32 s92, s92, s100\ns_cmp_gt_u32 s92, {P['thr']}")
E(f"s_cselect_b32 s{sA}, 0, 1\ns_xor_b32 s{sA}, s{sA}, s{sSIG}")
E(f"s_cmp_lt_u32 s{sC}, 2\ns_cselect_b32 s{sB}, s{sGRP}, 0\ns_xor_b32 s{sA}, s{sA}, s{sB}\ns_and_b32 s{sA}, s{sA}, 1")
E(f"s_lshl_b32 s{sB}, s{sC}, 3\ns_add_u32 s{sB}, s{sB}, 8\ns_lshl_b32 s{sA}, s{sA}, s{sB}\ns_add_u32 s{sA}, s{sA}, 1\nv_mov_b32 v{PL}, s{sA}\ns_mov_b64 exec, 1")
E(f"buffer_atomic_add v{PL}, off, {srd(SD)}, 0 sc1\ns_mov_b64 exec, -1\nL_voted:")
if P["e0late"]:
    h.wait("old")
    build_srd(SF, 12, 1 << 20); first_touch(P["pfM"])
    if P["e0late"] == 2: E("s_waitcnt vmcnt(0)")
    e_dma(0)
else:
    e_dma(0, range(N0, min(N0 + 1, 8)))
    if P["pfM"] and P["pfpos"] == 1:
        build_srd(SF, 12, 1 << 20); first_touch(P["pfM"])
    e_dma(0, range(N0 + 1, 8))
    if P["pfM"] and P["pfpos"] == 2:
        build_srd(SF, 12, 1 << 20); first_touch(P["pfM"])
stage_addr(0, 512)
build_srd(SF, 12, 1 << 20); build_srd(SO, 14, 32768); build_srd(SWS, 18, 1 << 30)
ce = struct.unpack("<I", struct.pack("<f", (128 ** -0.5) * math.log2(math.e)))[0]
E(f"s_mov_b32 s{sCE}, {ce:#x}\ns_lshl_b32 s{sSC}, s{sGRP}, 11")
E(f"s_lshl_b32 s{sOP}, s{sGRP}, 14\ns_add_u32 s{sOP}, s{sOP}, {OOFF}")
E(f"s_lshl_b32 s{sA}, s{sW}, 12\ns_add_u32 s{sO}, s{sOP}, s{sA}\ns_lshl_b32 s{sA}, s{sC}, 8\ns_add_u32 s{sO}, s{sO}, s{sA}")
E(f"s_lshl_b32 s{sA}, s{sC}, 11\ns_add_u32 s{sOP}, s{sOP}, s{sA}")
E(f"s_and_b32 s{sA}, s{sC}, 6\ns_add_u32 s{sOUT}, s{sHD}, s{sA}\ns_lshl_b32 s{sOUT}, s{sOUT}, 8\ns_and_b32 s{sA}, s{sC}, 1\ns_lshl_b32 s{sA}, s{sA}, 7\ns_add_u32 s{sOUT}, s{sOUT}, s{sA}")
E(f"s_lshl_b32 s{sFS}, s{sW}, 14\ns_add_u32 s{sFS}, s{sFS}, {L_F2}\ns_mov_b32 s{sA}, s{sFS}")
E(f"v_lshrrev_b32 v{TMP}, 2, v{vJ}\nv_lshl_add_u32 v{TMP}, v{vG}, 3, v{TMP}\nv_and_b32 v{TMP+1}, 1, v{vJ}\nv_lshlrev_b32 v{TMP+1}, 3, v{TMP+1}")
E(f"v_bfe_u32 v{TMP+2}, v{vJ}, 1, 1\nv_lshl_add_u32 v{TMP+1}, v{TMP+2}, 2, v{TMP+1}")
for hh in range(2):
    if hh: E(f"v_add_u32 v{TMP}, 4, v{TMP}")
    E(f"v_and_b32 v{TMP+2}, 15, v{TMP}\nv_xor_b32 v{TMP+2}, v{TMP+2}, v{TMP+1}\nv_lshlrev_b32 v{TMP+2}, 4, v{TMP+2}\nv_lshl_add_u32 v{TMP+2}, v{TMP}, 9, v{TMP+2}")
    E(f"v_add_u32 v{vFA+hh}, s{sA}, v{TMP+2}")
E(f"v_and_b32 v{TMP}, 1, v{vJ}\nv_lshlrev_b32 v{TMP+1}, 20, v{TMP}\nv_lshrrev_b32 v{TMP+2}, 1, v{vJ}\nv_lshl_add_u32 v{TMP+1}, v{TMP+2}, 8, v{TMP+1}\nv_lshl_add_u32 v{vSC}, v{vG}, 5, v{TMP+1}")
if P["lead"]:
    E(f"v_lshlrev_b32 v{TMP+1}, 8, v{TMP}\nv_lshl_add_u32 v{vSC}, v{vG}, 5, v{TMP+1}\ns_lshl_b32 s{sTOT}, s{sGRP}, 10\ns_add_u32 s{sTOT}, s{sTOT}, {TOFF}")
E(f"s_mov_b32 s{sSELA}, 0x0c0c0400\ns_mov_b32 s{sSELB}, 0x04000c0c\ns_mov_b32 s{sMASK}, 0xff")
E(f"s_lshl_b32 s{sA}, s{sW}, 10\ns_add_u32 s{sA}, s{sA}, {L_WA}\nv_lshlrev_b32 v{TMP}, 6, v{TMP}\nv_lshl_add_u32 v{TMP}, v{vG}, 4, v{TMP}\nv_add_u32 v{vWW}, s{sA}, v{TMP}")
E(f"v_lshlrev_b32 v{TMP}, 6, v{vL}\nv_add_u32 v{vSCR}, {L_SC}, v{TMP}\nv_lshlrev_b32 v{vL4}, 2, v{vL}")
E(f"v_lshlrev_b32 v{TMP}, 4, v{vL}\nv_add_u32 v{vPB}, {L_PB}, v{TMP}")
E(f"v_add_u32 v{vBW}, {L_PB}, v{vL4}\nv_and_b32 v{TMP}, 31, v{vL}\nv_lshlrev_b32 v{TMP}, 4, v{TMP}\nv_add_u32 v{vBR}, {L_PB}, v{TMP}\nv_mov_b32 v{vX}, v{TMP}")
E(f"s_lshl_b32 s{sA}, s{sW}, 11\ns_add_u32 s{sA}, s{sA}, {L_OL}\nv_add_u32 v{vOR}, s{sA}, v{TMP}")
E(f"v_and_b32 v{TMP}, 1, v{vG}\nv_lshlrev_b32 v{TMP+1}, 20, v{TMP}\nv_lshl_add_u32 v{vBS}, v{vJ}, 4, v{TMP+1}")
E(f"v_lshlrev_b32 v{TMP+1}, 11, v{TMP}\nv_lshl_add_u32 v{vOS}, v{vJ}, 4, v{TMP+1}")
E(f"v_lshlrev_b32 v{TMP+1}, 4, v{vJ}\nv_lshl_add_u32 v{vOP}, v{vG}, 8, v{TMP+1}\nv_lshlrev_b32 v{vOUT}, 3, v{vJ}")
E(f"v_lshl_add_u32 v{vOUT}, v{TMP}, 2, v{vOUT}\nv_lshrrev_b32 v{TMP}, 1, v{vG}\nv_lshl_add_u32 v{vOUT}, v{TMP}, 1, v{vOUT}")
def touch(sr, row0, col, nw):
    E(f"s_cmp_lt_u32 s{sW}, {nw}\ns_cbranch_scc0 L_t{sr}_{row0}_{col}")
    if nw == 2: E(f"s_lshl_b32 s{sA}, s{sGRP}, 1\ns_add_u32 s{sA}, s{sA}, s{sW}\ns_lshl_b32 s{sA}, s{sA}, 14")
    else: E(f"s_lshl_b32 s{sA}, s{sGRP}, 14\ns_lshl_b32 s{sB}, s{sW}, 10\ns_add_u32 s{sA}, s{sA}, s{sB}")
    E(f"s_and_b32 s{sB}, s{sC}, 3\ns_lshl_b32 s{sB}, s{sB}, 12\ns_add_u32 s{sA}, s{sA}, s{sB}\ns_add_u32 s{sA}, s{sA}, {row0*16384 + col}\nv_lshlrev_b32 v{TMP+8}, 4, v{vL}")
    E(f"buffer_load_dwordx4 {vr(PL+8)}, v{TMP+8}, {srd(sr)}, s{sA} offen {P['tpol']}\nL_t{sr}_{row0}_{col}:")
def slot_touch():
    if "S" in P["pfS"]:
        E(f"s_cmp_eq_u32 s{sW}, 0\ns_cbranch_scc0 L_st0\nv_and_b32 v{TMP}, 1, v{vG}\nv_lshlrev_b32 v{TMP}, 20, v{TMP}\nv_lshrrev_b32 v{TMP+1}, 1, v{vG}\nv_lshl_add_u32 v{TMP}, v{TMP+1}, 16, v{TMP}\nv_lshl_add_u32 v{TMP}, v{vJ}, 4, v{TMP}")
        E(f"s_lshl_b32 s{sA}, s2, 8\nbuffer_load_dwordx4 {vr(PL+16)}, v{TMP}, {srd(SWS)}, s{sA} offen\nL_st0:")
    if "O" in P["pfS"]:
        E(f"s_cmp_ge_u32 s{sW}, 2\ns_cbranch_scc0 L_st1\nv_lshlrev_b32 v{TMP}, 4, v{vL}\ns_lshl_b32 s{sA}, s2, 11\ns_and_b32 s{sB}, s{sW}, 1\ns_lshl_b32 s{sB}, s{sB}, 10\ns_add_u32 s{sA}, s{sA}, s{sB}\ns_add_u32 s{sA}, s{sA}, {OOFF}")
        E(f"buffer_load_dwordx4 {vr(PL+16)}, v{TMP}, {srd(SWS)}, s{sA} offen\nL_st1:")
    if "X" in P["pfS"]:
        E(f"s_cmp_eq_u32 s{sW}, 1\ns_cbranch_scc0 L_st2\ns_lshl_b32 s{sA}, s2, 9\ns_add_u32 s{sA}, s{sA}, {XOFF}")
        E(f"buffer_load_dwordx4 {vr(PL+16)}, v{vX}, {srd(SWS)}, s{sA} offen\nL_st2:")
slot_touch()
def split():
    E(f"s_mov_b32 s{sSPIN}, {min(P['spin'], 1 << 14)}\nL_tally:")
    E(f"buffer_load_dword v{vRDY}, off, {srd(SD)}, 0 sc1\ns_waitcnt vmcnt(0)\nv_readfirstlane_b32 s{sSIG}, v{vRDY}")
    E(f"s_and_b32 s{sA}, s{sSIG}, 0xff\ns_cmp_eq_u32 s{sA}, {P['NG']*NV}\ns_cbranch_scc1 L_tallied\ns_sleep 16\ns_sub_u32 s{sSPIN}, s{sSPIN}, 1\ns_cbranch_scc0 L_tally\nL_tallied:")
    h.done = h.n
    if P["force"] >= 0: E(f"s_mov_b32 s{sSIG}, {(P['force'] & 1) * 0x2000 + ((P['force'] >> 1) & 1) * 0x200000 + (P['force'] >> 2) * 0x20000000}")
    if P["wsv"]:
        E(f"s_lshr_b32 s{sA}, s{sSIG}, 24\ns_cmp_gt_u32 s{sA}, {P['NG']//2}\ns_cselect_b32 s{sA}, 0x2000, 0\ns_xor_b32 s{sO}, s{sO}, s{sA}\ns_xor_b32 s{sOP}, s{sOP}, s{sA}")
    E(f"s_lshr_b32 s{sB}, s{sC}, 2\ns_xor_b32 s{sB}, s{sB}, s{sGRP}\ns_and_b32 s{sB}, s{sB}, 1")
    for n, dst in ((0, sKD), (1, sVD)):
        E(f"s_bfe_u32 s{sA}, s{sSIG}, {0x80000 + 8 + 8*n:#x}\ns_cmp_gt_u32 s{sA}, {P['NG']//2}\ns_cselect_b32 s{sA}, 1, 0\ns_xor_b32 s{dst}, s{sA}, s{sB}")
        E(f"s_lshl_b32 s{sA}, s{dst}, 13\nv_mov_b32 v{TMP+n}, s{sA}")
    E(f"v_mov_b32 v{TMP+2}, {L_SG}\nds_write_b64 v{TMP+2}, v[{TMP}:{TMP+1}]")
    sh = 9 if P["fullline"] else 6
    E(f"s_lshl_b32 s{sA}, s{sKD}, {sh}\ns_add_u32 s{sT}, s{sE0}, s{sA}\ns_lshl_b32 s{sA}, s{sVD}, {sh}\ns_add_u32 s{sF0}, s{sF0}, s{sA}\ns_lshl_b32 s{sFB}, s{sW}, 10\ns_add_u32 s{sFB}, s{sFB}, s{sF0}\ns_waitcnt lgkmcnt(0)")
NB = P["NB"] if P["early"] else 0
def nonce_load():
    E(f"s_lshl_b32 s{sB}, s{sGRP}, 14\ns_add_u32 s{sB}, s{sB}, {OOFF}")
    if not P["e0late"]: h.issue(f"buffer_load_dwordx4 {vr(PL+4)}, off, {srd(SWS)}, s{sB} sc1 nt", "old")
def nonce_make():
    h.wait("old")
    E(f"v_perm_b32 v{TMP}, v{PL+5}, v{PL+4}, s{sSELA}\nv_perm_b32 v{TMP+1}, v{PL+7}, v{PL+6}, s{sSELB}\nv_or_b32 v{TMP}, v{TMP}, v{TMP+1}")
    E(f"v_readfirstlane_b32 s{sA}, v{TMP}")
    E(f"s_mul_i32 s{sNON}, s{sA}, 0x9e3779b1\ns_add_u32 s{sNON}, s{sNON}, 0x7f4a7c15\ns_lshr_b32 s{sB}, s{sNON}, 15\ns_xor_b32 s{sNON}, s{sNON}, s{sB}")
    E(f"s_xor_b32 s{sB}, s{sNON}, 2\ns_cmp_eq_u32 s{sNON}, s{sA}\ns_cselect_b32 s{sNON}, s{sB}, s{sNON}")
    E(f"v_mov_b32 v{vRDY}, s{sNON}")
    for m in range(4): E(f"v_lshrrev_b32 v{vTG+m}, {8*m}, v{vRDY}")
def tag_check(r, n):
    for m in range(n):
        E(f"v_perm_b32 v{TMP+2*m}, v{r+4*m+1}, v{r+4*m}, s{sSELA}\nv_perm_b32 v{TMP+2*m+1}, v{r+4*m+3}, v{r+4*m+2}, s{sSELB}")
    for m in range(n): E(f"v_or_b32 v{TMP+2*m}, v{TMP+2*m}, v{TMP+2*m+1}")
    for m in range(n): E(f"v_xor_b32 v{TMP+2*m}, s{sNON}, v{TMP+2*m}")
    for m in range(1, n): E(f"v_or_b32 v{TMP}, v{TMP}, v{TMP+2*m}")
    E(f"v_cmp_ne_u32 vcc, 0, v{TMP}")
def untag(r, n):
    for m in range(n): E(f"v_and_b32 v{r+m}, 0xffffff00, v{r+m}")
ST = 116
def reduce2(area):
    for n in range(2):
        for m in range(4): E(f"ds_read_b128 {vr(S+m*4)}, v{vSCR} offset:{area + n*4096 + m*16}")
        E("s_waitcnt lgkmcnt(0)")
        for st in (8, 4, 2):
            for m in range(st): E(f"v_add_f32 v{S+m}, v{S+m}, v{S+m+st}")
        E(f"v_add_f32 v{WT+n}, v{S}, v{S+1}")
    E(f"ds_write_b32 v{vBW}, v{WT}\nds_write_b32 v{vBW}, v{WT+1} offset:256\ns_waitcnt lgkmcnt(0)\nds_read_b128 {vr(S)}, v{vBR}\ns_waitcnt lgkmcnt(0)")
def crossed(label):
    E(f"s_lshr_b32 s{sA}, s{sC}, 2\ns_cmp_eq_u32 s{sA}, s{sKD}\ns_cbranch_scc1 {label}")
def fixed_out():
    E(f"s_cmp_eq_u32 s{sW}, 3\ns_cbranch_scc0 L_fo")
    reduce2(L_ST - L_SC)
    for m in range(4): E(f"v_bfi_b32 v{ST+m}, s{sMASK}, v{vTG+m}, v{S+m}")
    crossed("L_fo")
    E(f"s_lshl_b32 s{sA}, s2, 9\ns_add_u32 s{sA}, s{sA}, {XOFF}\ns_mov_b32 exec_hi, 0")
    E(f"buffer_store_dwordx4 {vr(ST)}, v{vX}, {srd(SWS)}, s{sA} offen {STP}\ns_mov_b64 exec, -1\nL_fo:")
def fixed_in():
    E(f"s_cmp_eq_u32 s{sW}, 3\ns_cbranch_scc0 L_fi")
    crossed("L_fi")
    E(f"s_xor_b32 s{sA}, s2, 4\ns_lshl_b32 s{sA}, s{sA}, 9\ns_add_u32 s{sA}, s{sA}, {XOFF}\ns_mov_b32 s{sSPIN}, {P['spin']}\nL_fi_poll:")
    E(f"buffer_load_dwordx4 {vr(ST)}, v{vX}, {srd(SWS)}, s{sA} offen {LDP}\ns_waitcnt vmcnt(0)")
    tag_check(ST, 1)
    E(f"s_cbranch_vccz L_fi\ns_sleep 8\ns_sub_u32 s{sSPIN}, s{sSPIN}, 1\ns_cbranch_scc0 L_fi_poll\nL_fi:")
def publish(ev):
    E(f"s_cmp_eq_u32 s{sW}, 3\ns_cbranch_scc0 L_pub{ev}")
    reduce2(0)
    if ev == 0:
        untag(ST, 4)
        for m in range(4): E(f"v_add_f32 v{S+m}, v{S+m}, v{ST+m}")
    for m in range(4): E(f"v_bfi_b32 v{S+m}, s{sMASK}, v{vTG+m}, v{S+m}")
    E(f"s_and_b32 s{sA}, s{sC}, 3\ns_lshl_b32 s{sB}, s{sKD}, 2\ns_add_u32 s{sA}, s{sA}, s{sB}\ns_lshl_b32 s{sA}, s{sA}, 8\ns_add_u32 s{sA}, s{sA}, s{sSC}\ns_add_u32 s{sA}, s{sA}, {ev * 65536}\ns_mov_b32 exec_hi, 0")
    if "s" not in P["nosync"]: E(f"buffer_store_dwordx4 {vr(S)}, v{vBS}, {srd(SWS)}, s{sA} offen {STP}")
    E(f"s_mov_b64 exec, -1\nL_pub{ev}:")
def leader(ev):
    if "l" in P["nosync"] or not P["lead"]: return
    E(f"s_and_b32 s{sA}, s{sC}, 5\ns_lshl_b32 s{sB}, s{sW}, 3\ns_or_b32 s{sA}, s{sA}, s{sB}\ns_cmp_eq_u32 s{sA}, {4*ev + 8}\ns_cbranch_scc0 L_ld{ev}")
    E(f"s_bfe_u32 s{sB}, s{sC}, 0x10001\ns_lshl_b32 s{sB}, s{sB}, 20\ns_add_u32 s{sB}, s{sB}, s{sSC}\ns_add_u32 s{sB}, s{sB}, {ev*65536}")
    E(f"s_mov_b32 s{sSPIN}, {P['spin']}\nL_lp{ev}:")
    E(f"buffer_load_dwordx4 {vr(PL)}, v{vOP}, {srd(SWS)}, s{sB} offen {LDP}")
    E(f"buffer_load_dwordx4 {vr(PL+4)}, v{vOP}, {srd(SWS)}, s{sB} offen offset:1024 {LDP}")
    E("s_waitcnt vmcnt(0)")
    tag_check(PL, 2)
    E(f"s_cbranch_vccz L_lg{ev}\ns_sleep 8\ns_sub_u32 s{sSPIN}, s{sSPIN}, 1\ns_cbranch_scc0 L_lp{ev}\nL_lg{ev}:")
    untag(PL, 8)
    for m in range(4): E(f"v_add_f32 v{PL+m}, v{PL+m}, v{PL+4+m}")
    for sw in ("v_permlane32_swap_b32", "v_permlane16_swap_b32"):
        for m in range(4): E(f"v_mov_b32 v{PL+4+m}, v{PL+m}")
        for m in range(4): E(f"{sw} v{PL+4+m}, v{PL+m}")
        for m in range(4): E(f"v_add_f32 v{PL+m}, v{PL+4+m}, v{PL+m}")
    for m in range(4): E(f"v_bfi_b32 v{PL+m}, s{sMASK}, v{vTG+m}, v{PL+m}")
    E(f"s_lshl_b32 s{sB}, s{sC}, 7\ns_add_u32 s{sB}, s{sB}, s{sTOT}\ns_mov_b64 exec, 0xffff")
    E(f"buffer_store_dwordx4 {vr(PL)}, v{vOP}, {srd(SWS)}, s{sB} offen {STP}\ns_mov_b64 exec, -1\nL_ld{ev}:")
def f_loads(ks, ts):
    for t in ts:
        if P["noF"]: continue
        pat = P[f"F{ks}"]; h.window(int(pat[t % len(pat)]))
        E(f"s_add_u32 m0, s{sFS}, {t*1024}\ns_add_u32 s{sA}, s{sFB}, {ks*524288 + t*32768}")
        h.issue(f"buffer_load_dwordx4 v{vD+(t&7)}, {srd(SF)}, s{sA} offen {P['fpol']} lds")
def f_reads(ks):
    h.drain()
    for w_ in range(4):
        for hh in range(2): E(f"v_xor_b32 v{TMP+hh}, {w_*16}, v{vFA+hh}")
        for bb in range(2):
            for hb in range(2):
                for hh in range(2):
                    E(f"ds_read_b64_tr_b16 {ar(aFT + (((bb*4+w_)*2+hb)*2+ks)*4 + hh*2, 2)}, v{TMP+hh} offset:{bb*256 + hb*8}")
        E("s_waitcnt lgkmcnt(0)")
def xg(op, r):
    for sw in ("v_permlane32_swap_b32", "v_permlane16_swap_b32"):
        E(f"v_mov_b32 v{TMP+1}, v{r}\n{sw} v{TMP+1}, v{r}\n{op} v{r}, v{TMP+1}, v{r}")
def softmax(ev):
    E(f"s_cmp_eq_u32 s{sW}, 0\ns_cbranch_scc0 L_sm{ev}")
    if "l" not in P["nosync"]:
        E(f"s_add_u32 s{sA}, s{sTOT}, {ev*512}" if P["lead"] else f"s_add_u32 s{sA}, s{sSC}, {ev*65536}")
        E(f"s_mov_b32 s{sSPIN}, {P['spin']}\nL_sc{ev}:")
        for m, o in enumerate((0, 16, 128, 144)): E(f"buffer_load_dwordx4 {vr(S+m*4)}, v{vSC}, {srd(SWS)}, s{sA} offen offset:{o} {LDP}")
        E("s_waitcnt vmcnt(0)")
        tag_check(S, 4)
        E(f"s_cbranch_vccz L_sc_ok{ev}\ns_sleep 8\ns_sub_u32 s{sSPIN}, s{sSPIN}, 1\ns_cbranch_scc0 L_sc{ev}\nL_sc_ok{ev}:")
    untag(S, 16)
    for ctl in ("quad_perm:[2,3,0,1]", "row_ror:4", "row_ror:8") if not P["lead"] else ():
        for m in range(16): E(f"v_add_f32_dpp v{S+m}, v{S+m}, v{S+m} {ctl} row_mask:0xf bank_mask:0xf")
    maxtree("v_max3_f32", TMP + 2, range(S, S + 16)); xg("v_max_f32", TMP + 2)
    E(f"v_mul_f32 v{TMP+2}, s{sCE}, v{TMP+2}")
    for m in range(16): E(f"v_fma_f32 v{S+m}, v{S+m}, s{sCE}, -v{TMP+2}")
    for m in range(16): E(f"v_exp_f32 v{S+m}, v{S+m}")
    for m in range(4): E(f"v_add_f32 v{TMP+4+m}, v{S+m}, v{S+m+4}")
    for m in range(4): E(f"v_add_f32 v{TMP+8+m}, v{S+m+8}, v{S+m+12}")
    for m in range(4): E(f"v_add_f32 v{TMP+4+m}, v{TMP+4+m}, v{TMP+8+m}")
    E(f"v_add_f32 v{TMP+4}, v{TMP+4}, v{TMP+5}\nv_add_f32 v{TMP+6}, v{TMP+6}, v{TMP+7}\nv_add_f32 v{TMP+3}, v{TMP+4}, v{TMP+6}")
    xg("v_add_f32", TMP + 3)
    E(f"v_rcp_f32 v{TMP+3}, v{TMP+3}")
    for m in range(16): E(f"v_mul_f32 v{S+m}, v{S+m}, v{TMP+3}")
    for m in range(8): E(f"v_cvt_pk_bf16_f32 v{PB+m}, v{S+2*m}, v{S+2*m+1}")
    E(f"ds_write_b128 v{vPB}, {vr(PB)}\nds_write_b128 v{vPB}, {vr(PB+4)} offset:1024\ns_waitcnt lgkmcnt(0)\nL_sm{ev}:")
def weights(ev):
    E(f"ds_read_b128 {vr(PB)}, v{vPB}\nds_read_b128 {vr(PB+4)}, v{vPB} offset:1024")
    E("s_mov_b32 s100, 0x00030003\ns_mov_b32 s101, 0x00030003\ns_waitcnt lgkmcnt(0)")
    for bb in range(2):
        for w_ in range(4):
            for ks in range(2):
                for hb in range(2):
                    c_ = "0" if ks == 0 else vr(DD + hb * 4)
                    E(f"v_mfma_f32_16x16x32_bf16 {vr(DD+hb*4)}, {ar(aFT + (((bb*4+w_)*2+hb)*2+ks)*4)}, {vr(PB+ks*4)}, {c_}")
            for kk in range(4): E(f"v_cvt_pk_bf16_f32 v{WT+kk}, v{DD+2*kk}, v{DD+2*kk+1}")
            E(f"s_mov_b64 exec, s[100:101]\nds_write_b128 v{vWW}, {vr(WT)} offset:{ev*4096 + bb*512 + w_*128}\ns_mov_b64 exec, -1")
    E("s_waitcnt lgkmcnt(0)")
for k in BARS:
    if k in EBAR:
        B = EBAR.index(k)
        h.wait(("D", B))
        E("s_barrier")
        if B == 0: nonce_load(); split(); nonce_make()
        if B == 1: fixed_out()
        if B == 3: fixed_in()
        if 0 < B < 4: e_dma(B + 1)
        if B == 3: f_loads(0, range(NB))
        if B == 4:
            publish(0)
            f_loads(0, range(NB, 10)); leader(0); f_loads(0, range(10, 16)); f_reads(0)
            if P["smpos"] == 1: softmax(0)
            f_loads(1, range(8))
            if P["smpos"] == 2: softmax(0)
            f_loads(1, range(8, 16)); f_reads(1)
            if not P["smpos"]: softmax(0)
    elif k in SBAR:
        E("s_barrier"); e_dma(1)
    elif k in UBAR:
        E("s_barrier"); publish(1)
    elif k in LBAR:
        E("s_barrier"); leader(1)
    elif k in PBAR:
        E("s_barrier"); weights(PBAR.index(k))
    elif k == XBAR[0]:
        E("s_barrier"); softmax(1)
    else:
        E("s_barrier")
E("s_barrier")
for w_ in range(4): E(f"ds_read_b128 {vr(S+w_*4)}, v{vOR} offset:{w_*512}")
E("s_mov_b32 exec_hi, 0\ns_waitcnt lgkmcnt(2)")
for m in range(4): E(f"v_add_f32 v{S+m}, v{S+m}, v{S+4+m}")
E("s_waitcnt lgkmcnt(0)")
for m in range(4): E(f"v_add_f32 v{S+8+m}, v{S+8+m}, v{S+12+m}")
for m in range(4): E(f"v_add_f32 v{S+m}, v{S+m}, v{S+8+m}")
for m in range(4): E(f"v_bfi_b32 v{S+m}, s{sMASK}, v{vTG+m}, v{S+m}")
E(f"buffer_store_dwordx4 {vr(S)}, v{vOS}, {srd(SWS)}, s{sO} offen sc1\ns_mov_b64 exec, -1")
E(f"s_cmp_eq_u32 s{sW}, 0\ns_cbranch_scc0 L_done")
if P["stamps"]: E("s_memrealtime s[86:87]")
E(f"s_mov_b32 s{sSPIN}, {P['spin']}\nL_poll:")
E(f"buffer_load_dwordx4 {vr(PL)}, v{vOP}, {srd(SWS)}, s{sOP} offen sc1")
E(f"buffer_load_dwordx4 {vr(PL+4)}, v{vOP}, {srd(SWS)}, s{sOP} offen offset:1024 sc1")
E("s_waitcnt vmcnt(0)")
tag_check(PL, 2)
E(f"s_sub_u32 s{sSPIN}, s{sSPIN}, 1\ns_cbranch_scc1 L_got\ns_cbranch_vccnz L_poll\nL_got:")
untag(PL, 8)
for m in range(4): E(f"v_add_f32 v{PL+m}, v{PL+m}, v{PL+4+m}")
E(f"v_permlane32_swap_b32 v{PL}, v{PL+1}\nv_permlane32_swap_b32 v{PL+2}, v{PL+3}")
E(f"v_add_f32 v{PL}, v{PL}, v{PL+1}\nv_add_f32 v{PL+2}, v{PL+2}, v{PL+3}")
E(f"v_permlane16_swap_b32 v{PL}, v{PL+2}\nv_add_f32 v{PL}, v{PL}, v{PL+2}\nv_cvt_pk_bf16_f32 v{PL+4}, v{PL}, v{PL}")
if P["fixt"]:
    E(f"L_fix:\ns_memrealtime s[92:93]\ns_waitcnt lgkmcnt(0)\ns_sub_u32 s92, s92, s90\ns_cmp_lt_u32 s92, {P['fixt']}\ns_cbranch_scc1 L_fix")
E(f"buffer_store_short v{PL+4}, v{vOUT}, {srd(SO)}, s{sOUT} offen")
if P["stamps"]:
    E("s_waitcnt vmcnt(0)\ns_memrealtime s[92:93]\ns_getreg_b32 s72, hwreg(HW_REG_XCC_ID)")
    E(f"v_mov_b32 v{TMP}, 0\nds_read_b128 v[56:59], v{TMP}\nds_read_b128 v[60:63], v{TMP} offset:16\ns_waitcnt lgkmcnt(0)")
    E("s_sub_u32 s86, s86, s90")
    for m in range(8): E(f"v_subrev_u32 v{56+m}, s90, v{56+m}")
    for m, sr in enumerate((90, 91, 92, 93, 72, 84, 86, sSIG)): E(f"v_mov_b32 v{48+m}, s{sr}")
    E("v_mov_b32 v53, v63")
    if P["cdump"]: E("v_mov_b32 v54, s75")
    E(f"s_lshl_b32 s{sA}, s2, 6\ns_add_u32 s{sA}, s{sA}, 0x20000000\ns_mov_b64 exec, 1")
    for m in range(4): E(f"buffer_store_dwordx4 {vr(48+m*4)}, off, {srd(SWS)}, s{sA} offset:{m*16}")
E("L_done:\ns_endpgm")
E.raw('.section .rodata,"a"\n.p2align 6')
E.raw(f""".amdhsa_kernel {NAME}
  .amdhsa_next_free_vgpr 256
  .amdhsa_next_free_sgpr 102
  .amdhsa_accum_offset 128
  .amdhsa_group_segment_fixed_size 0
  .amdhsa_float_denorm_mode_32 3
  .amdhsa_kernarg_size 64
  .amdhsa_user_sgpr_count 2
  .amdhsa_user_sgpr_kernarg_segment_ptr 1
  .amdhsa_system_sgpr_workgroup_id_x 1
.end_amdhsa_kernel""")
open(out, "w").write(E.text())
print(out, "instructions", E.count, "auto nops", E.nops, "held", HELD, file=sys.stderr)
```
